```python
import torch

def _softmax(x, axis=-1):
    return torch.softmax(x, dim=axis)
def _gelu(x):
    return torch.nn.functional.gelu(x, approximate="tanh")
def _silu(x):
    return torch.nn.functional.silu(x)
def _sigmoid(x):
    return torch.sigmoid(x)
def _layernorm(x, axis=-1, eps=1e-5):
    m = x.mean(dim=axis, keepdim=True)
    v = x.var(dim=axis, keepdim=True, unbiased=False)
    return (x - m) / torch.sqrt(v + eps)
def _scatter_add(tgt, idx, src, axis=0):
    return tgt.clone().index_add_(axis, idx, src)
def _segment_sum(src, seg, n):
    out = torch.zeros((n,) + src.shape[1:], dtype=src.dtype)
    return out.index_add_(0, seg, src)
def _pad(x, pw):
    flat = tuple(v for pair in reversed(pw) for v in pair)
    return torch.nn.functional.pad(x, flat)

kernel_name = 'gated_mix__compressed_kv_cla__mixer_s_mlp__prompt'

def setup_inputs():

    _w = (lambda a: (lambda t: t.to(torch.bfloat16) if t.is_floating_point() else t)(torch.as_tensor(a)))
    def _A_setup():
        B, H, Sq, Sk, D, M = 1, 16, 2048, 2048, 256, 448
        Dc = 4 * D
        return {
            "x": _w((lambda *s: torch.randn(*s, dtype=torch.bfloat16) * 0.05)(B, Sq, M)),
            "c_kv": _w((lambda *s: torch.randn(*s, dtype=torch.bfloat16) * 1.6)(B, Sk, Dc)),
            "w_q": _w((lambda *s: torch.randn(*s, dtype=torch.bfloat16) * 6.4)(M, H, D) * (M ** -0.5)),
            "w_uk": _w((lambda *s: torch.randn(*s, dtype=torch.bfloat16) * 6.4)(Dc, H, D) * (Dc ** -0.5)),
            "w_uv": _w((lambda *s: torch.randn(*s, dtype=torch.bfloat16) * 1.6)(Dc, H, D) * (Dc ** -0.5)),
            "w_o": _w((lambda *s: torch.randn(*s, dtype=torch.bfloat16) * 1.6)(H, D, M) * ((H * D) ** -0.5)),
        }
    _A_in = _A_setup()

    def _B_setup():
        B, S, D, F = 1, 2048, 448, 1792
        return {
            "x":  _w((lambda *s: torch.randn(*s, dtype=torch.bfloat16) * 0.05)(B, S, D)),
            "w1": _w((lambda *s: torch.randn(*s, dtype=torch.bfloat16) * 3.2)(D, D) * (D ** -0.5)),
            "w2": _w((lambda *s: torch.randn(*s, dtype=torch.bfloat16) * 3.2)(D, D) * (D ** -0.5)),
            "w3": _w((lambda *s: torch.randn(*s, dtype=torch.bfloat16) * 3.2)(D, F) * (D ** -0.5)),
            "w4": _w((lambda *s: torch.randn(*s, dtype=torch.bfloat16) * 1.6)(F, D) * (F ** -0.5)),
        }
    _B_in = _B_setup()

    return {
        "A_x": _A_in["x"],
        "A_c_kv": _A_in["c_kv"],
        "A_w_q": _A_in["w_q"],
        "A_w_uk": _A_in["w_uk"],
        "A_w_uv": _A_in["w_uv"],
        "A_w_o": _A_in["w_o"],
        "B_x": _B_in["x"],
        "B_w1": _B_in["w1"],
        "B_w2": _B_in["w2"],
        "B_w3": _B_in["w3"],
        "B_w4": _B_in["w4"],
        "gate_w": _w((lambda *s: torch.randn(*s, dtype=torch.bfloat16) * 0.05)(448) * 16.0),
    }

def reference(A_x, A_c_kv, A_w_q, A_w_uk, A_w_uv, A_w_o, B_x, B_w1, B_w2, B_w3, B_w4, gate_w):
    def _A_ref(x, c_kv, w_q, w_uk, w_uv, w_o):
        B, Sq, M = x.shape[0], x.shape[1], x.shape[2]
        Sk = c_kv.shape[1]
        H, D = w_q.shape[1], w_q.shape[2]
        q = torch.einsum("bqm,mhd->bhqd", x, w_q)
        k = torch.einsum("bkc,chd->bhkd", c_kv, w_uk)
        v = torch.einsum("bkc,chd->bhkd", c_kv, w_uv)
        scores = torch.einsum("bhqd,bhkd->bhqk", q, k) * (D ** -0.5)
        off = Sk - Sq
        qi = torch.arange(Sq)[:, None]
        kj = torch.arange(Sk)[None, :]
        cmask = kj <= (qi + off)
        scores = torch.where(cmask[None, None], scores, -1e9)
        p = _softmax(scores, axis=-1)
        ctx = torch.einsum("bhqk,bhkd->bhqd", p, v)
        return torch.einsum("bhqd,hdm->bqm", ctx, w_o)

    def _B_ref(x, w1, w2, w3, w4):
        B, S, D = x.shape
        h = _gelu(_layernorm(x, axis=-1) @ w1)
        c = D // 4
        g0 = _pad(h[:, :, 0*c:1*c], ((0, 0), (1, 0), (0, 0)))[:, :S, :]
        g1 = _pad(h[:, :, 1*c:2*c], ((0, 0), (0, 1), (0, 0)))[:, 1:, :]
        g2 = _pad(h[:, :, 2*c:3*c], ((0, 0), (2, 0), (0, 0)))[:, :S, :]
        g3 = _pad(h[:, :, 3*c:   ], ((0, 0), (0, 2), (0, 0)))[:, 2:, :]
        hs = torch.concatenate([g0, g1, g2, g3], axis=-1) @ w2
        x1 = x + hs
        h2 = _gelu(_layernorm(x1, axis=-1) @ w3) @ w4
        return x1 + h2

    x = A_x
    g = _sigmoid((x * gate_w).sum(-1, keepdims=True))
    a = _A_ref(x, A_c_kv, A_w_q, A_w_uk, A_w_uv, A_w_o)
    b = _B_ref(x, B_w1, B_w2, B_w3, B_w4)
    return g * a + (1 - g) * b
```

```python
NAME = "gated_mix__compressed_kv_cla__mixer_s_mlp__prompt"

HEADER = """; Kernarg layout (120 bytes, ptrs only, base s[0:1]):
;   32 A_w_uv (1024,16,256) | 40 A_w_o (16,256,448) | 48 B_x | 56 B_w1 (448,448) | 64 B_w2 (448,448)
"""

class Asm:
    def __init__(self):
        self.lines = []
        self.kernels = []
        self.launches = []
        self._lab = 0
    def __call__(self, s=""):
        for l in s.split("\n"):
            l = l.strip()
            if l:
                self.lines.append(l if l.endswith(":") else "    " + l)
    def label(self, base="L"):
        self._lab += 1
        return f"{base}_{self._lab}"
    def begin_kernel(self, label):
        self.lines.append(f".globl {label}")
        self.lines.append(".p2align 8")
        self.lines.append(f".type {label},@function")
        self.lines.append(f"{label}:")
    def end_kernel(self, label, vgpr, accum, sgpr=102):
        self.kernels.append((label, vgpr, accum, sgpr))
    def launch(self, label, grid, block, lds):
        self.launches.append((label, grid, block, lds))
    def text(self):
        out = [HEADER.rstrip("\n")]
        for (label, g, b, lds) in self.launches:
            out.append(f"; @launch kernel={label} grid=({g[0]},{g[1]},{g[2]}) block=({b[0]},{b[1]},{b[2]}) lds={lds}")
        out.append('.amdgcn_target "amdgcn-amd-amdhsa--gfx950"')
        out.append(".text")
        out += self.lines
        out.append('.section .rodata,"a"')
        for (label, vgpr, accum, sgpr) in self.kernels:
            out.append(".p2align 6")
            out.append(f".amdhsa_kernel {label}")
            out.append(f"  .amdhsa_next_free_vgpr {vgpr}")
            out.append(f"  .amdhsa_next_free_sgpr {sgpr}")
            out.append(f"  .amdhsa_accum_offset {accum}")
            out.append("  .amdhsa_group_segment_fixed_size 0")
            out.append("  .amdhsa_kernarg_size 120")
            out.append("  .amdhsa_user_sgpr_count 2")
            out.append("  .amdhsa_user_sgpr_kernarg_segment_ptr 1")
            out.append("  .amdhsa_system_sgpr_workgroup_id_x 1")
            out.append("  .amdhsa_float_denorm_mode_32 3")
            out.append(".end_amdhsa_kernel")
        return "\n".join(out) + "\n"

KARG = dict(x=0, ckv=8, wq=16, wuk=24, wuv=32, wo=40, bx=48, w1=56, w2=64, w3=72, w4=80, gw=88, out=96, dbg=104, ws=112)
SIZES = dict(x=2048*448*2, ckv=2048*1024*2, wq=448*4096*2, wuk=1024*4096*2, wuv=1024*4096*2, wo=4096*448*2,
             bx=2048*448*2, w1=448*448*2, w2=448*448*2, w3=448*1792*2, w4=1792*448*2, gw=448*2,
             out=2048*448*2, dbg=256, ws=268435456)

def srd(a, d, p, size):
    a(f"s_mov_b32 s{d}, s{p}")
    a(f"s_and_b32 s{d+1}, s{p+1}, 0xffff")
    a(f"s_mov_b32 s{d+2}, {size}")
    a(f"s_mov_b32 s{d+3}, 0x20000")


STAMP_OFF = 200 << 20
def stamp_begin(a):
    a("s_memtime s[70:71]")
    a("s_memrealtime s[72:73]")
    for i in range(8):
        a(f"s_mov_b32 s{74+2*i}, 0")
def stamp_mid(a, i):
    a(f"s_memtime s[{74+2*i}:{75+2*i}]")
def stamp_end(a, kidx, done, wave_s="s16", wsel=0):
    a("s_waitcnt vmcnt(0)")
    a("s_memtime s[90:91]")
    a("s_memrealtime s[92:93]")
    a("s_load_dwordx2 s[94:95], s[0:1], 112")
    a("s_waitcnt lgkmcnt(0)")
    a("s_sub_u32 s90, s90, s70")
    a(f"s_cmp_lg_u32 {wave_s}, {wsel}")
    a(f"s_cbranch_scc1 {done}")
    srd(a, 96, 94, 268435456)
    a("v_mov_b32 v4, s72")
    a("v_mov_b32 v5, s92")
    a("v_mov_b32 v6, s90")
    a("v_mov_b32 v7, 0")
    for i in range(8):
        a(f"s_sub_u32 s{74+2*i}, s{74+2*i}, s70")
        a(f"v_mov_b32 v{8+i}, s{74+2*i}")
    a("s_lshl_b32 s91, s2, 6")
    a(f"s_add_u32 s91, s91, {STAMP_OFF + kidx * 65536}")
    a("v_mov_b32 v3, 0")
    a("buffer_store_dwordx4 v[4:7], v3, s[96:99], s91 offen")
    a("buffer_store_dwordx4 v[8:11], v3, s[96:99], s91 offen offset:16")
    a("buffer_store_dwordx4 v[12:15], v3, s[96:99], s91 offen offset:32")
def gen_stampk(a, label, kidx):
    a.begin_kernel(label)
    d = a.label("st_done")
    stamp_begin(a)
    a("v_lshrrev_b32 v1, 6, v0")
    a("s_nop 0")
    a("v_readfirstlane_b32 s16, v1")
    stamp_end(a, kidx, d)
    a(f"{d}:")
    a("s_endpgm")
    a.end_kernel(label, 16, 16, 102)
```

```python
from asmlib import *

WS_K = 0
WS_V = 16 << 20
WS_Q = 32 << 20
WS_C = 48 << 20
CF_PITCH = 184 * 1024
WS_PART = 80 << 20
PART_W = 33 * 1024
WS_G = 100 << 20
WS_FLAG = 101 << 20

O = 0
def Oreg(b, dt): return (b * 16 + dt) * 4
def S(buf, e, b): return 128 + buf * 16 + (e * 2 + b) * 4
def P(buf, b): return 160 + buf * 8 + b * 4
def NEGM(b): return 176 + b * 4
def E(e, b): return 184 + (e * 2 + b) * 4
PS = 200; LS = 202; VK = 204; VV = 205; VL16 = 206; VD = 207; VNINF = 208; T = 210
def Q(b, k): return (b * 8 + k) * 4
def FR(n): return 64 + (n % 16) * 4
THR = 0x4e800000

def vr(r, n=4): return f"v[{r}:{r+n-1}]"
def ar(r, n=4): return f"a[{r}:{r+n-1}]"

def cost(ins):
    if ins.startswith("v_exp") or ins.startswith("v_rcp") or ins.startswith("v_log"): return 8
    return 4

class Sched:
    def __init__(self, mfmas, cap=8):
        self.m = mfmas
        self.g = [[] for _ in mfmas]
        self.used = [0] * len(mfmas)
        self.pre = [[] for _ in mfmas]
        self.cap = cap
    def fix(self, gap, ins):
        self.g[gap].append(ins); self.used[gap] += cost(ins)
    def before(self, idx, ins):
        self.pre[idx].append(ins)
        if idx > 0: self.used[idx - 1] += cost(ins)
    def stream(self, items, start, end):
        n = len(items); cur = start
        for i, ins in enumerate(items):
            want = max(cur, start + (i * (end - start)) // n)
            gsel = None
            for gi in range(want, end):
                if self.used[gi] + cost(ins) <= self.cap:
                    gsel = gi; break
                if gi - want > 3: break
            if gsel is None:
                cand = list(range(min(want, end - 1), min(want + 3, end)))
                gsel = min(cand, key=lambda x: self.used[x])
            self.fix(gsel, ins); cur = gsel
    def emit(self, a):
        for i, m in enumerate(self.m):
            for x in self.pre[i]: a(x)
            a(m)
            for x in self.g[i]: a(x)

def pv_mfmas(pbuf, f0):
    out = []
    for dt in range(16):
        for b in range(2):
            out.append(f"v_mfma_f32_16x16x32_bf16 {vr(Oreg(b,dt))}, {ar(FR(f0+dt))}, {vr(P(pbuf,b))}, {vr(Oreg(b,dt))}")
    return out
def qk_mfmas(sbuf, f0, zero=False):
    out = []
    for e in range(2):
        for k in range(8):
            for b in range(2):
                C = vr(S(sbuf, e, b)) if k else ("0" if zero else vr(NEGM(b)))
                out.append(f"v_mfma_f32_16x16x32_bf16 {vr(S(sbuf,e,b))}, {ar(FR(f0+e*8+k))}, {ar(Q(b,k))}, {C}")
    return out
def kread(par, i, f): return f"ds_read_b128 {ar(FR(f))}, v{VK} offset:{par*16384 + i*1024}"
def vread(par, i, f): return f"ds_read_b128 {ar(FR(f))}, v{VV} offset:{par*16384 + i*1024}"

def mask_ops(sbuf):
    cm = []; sel = []
    idx = {}
    n = 0
    out = []
    for d in (-1, 0, 1):
        for r in range(4):
            sp = 44 + 2 * (n % 12); n += 1
            idx[(d, r)] = sp
            cm.append(f"v_cmp_gt_i32 s[{sp}:{sp+1}], {16*d+r}, v{VD}")
    for e in range(2):
        for b in range(2):
            for r in range(4):
                sp = idx[(e - b, r)]
                sel.append(f"v_cndmask_b32 v{S(sbuf,e,b)+r}, v{S(sbuf,e,b)+r}, v{VNINF}, s[{sp}:{sp+1}]")
    return cm, sel

def softmax_ops(sbuf, pbuf):
    out = []
    groups = [(0, 0), (0, 1), (1, 0), (1, 1)]
    def post(e, b):
        t = E(e, b)
        o = []
        if e == 0:
            o.append(f"v_add_f32 v{PS+b}, v{t}, v{t+1}")
        else:
            o.append(f"v_add_f32 v{PS+b}, v{PS+b}, v{t}")
            o.append(f"v_add_f32 v{PS+b}, v{PS+b}, v{t+1}")
        o.append(f"v_cvt_pk_bf16_f32 v{P(pbuf,b)+2*e}, v{t}, v{t+1}")
        o.append(f"v_add_f32 v{PS+b}, v{PS+b}, v{t+2}")
        o.append(f"v_cvt_pk_bf16_f32 v{P(pbuf,b)+2*e+1}, v{t+2}, v{t+3}")
        o.append(f"v_add_f32 v{PS+b}, v{PS+b}, v{t+3}")
        return o
    prev = []
    for (e, b) in groups:
        ex = [f"v_exp_f32 v{E(e,b)+r}, v{S(sbuf,e,b)+r}" for r in range(4)]
        m = []
        pi = 0
        for i, x in enumerate(ex):
            m.append(x)
            take = (len(prev) * (i + 1)) // 4
            while pi < take:
                m.append(prev[pi]); pi += 1
        out += m
        prev = post(e, b)
    out.append("s_nop 0")
    out += prev
    return out

def xlane_reduce(a, op, regs, tmp):
    for swap in ("v_permlane16_swap_b32", "v_permlane32_swap_b32"):
        for i, r in enumerate(regs):
            a(f"v_mov_b32 v{tmp+i}, v{r}")
        a("s_nop 1")
        for i, r in enumerate(regs):
            a(f"{swap} v{tmp+i}, v{r}")
        a("s_nop 1")
        for i, r in enumerate(regs):
            a(f"{op} v{r}, v{r}, v{tmp+i}")

def rowmax(a, sbuf, dst):
    for b in range(2):
        s0, s1 = S(sbuf, 0, b), S(sbuf, 1, b)
        a(f"v_max3_f32 v{dst+b}, v{s0}, v{s0+1}, v{s0+2}")
        a(f"v_max3_f32 v{dst+b}, v{dst+b}, v{s0+3}, v{s1}")
        a(f"v_max3_f32 v{dst+b}, v{dst+b}, v{s1+1}, v{s1+2}")
        a(f"v_max_f32 v{dst+b}, v{dst+b}, v{s1+3}")
    xlane_reduce(a, "v_max_f32", [dst, dst + 1], dst + 2)

def slow_path(a, sbuf, has_next):
    a("s_nop 15")
    rowmax(a, sbuf, T)
    for b in range(2):
        a(f"v_max_f32 v{T+b}, 0, v{T+b}")
        a(f"v_sub_f32 v{T+2+b}, 0, v{T+b}")
    for b in range(2):
        a(f"v_exp_f32 v{T+2+b}, v{T+2+b}")
    for b in range(2):
        for e in range(2):
            for r in range(4):
                a(f"v_sub_f32 v{S(sbuf,e,b)+r}, v{S(sbuf,e,b)+r}, v{T+b}")
                if has_next:
                    a(f"v_sub_f32 v{S(sbuf^1,e,b)+r}, v{S(sbuf^1,e,b)+r}, v{T+b}")
        for r in range(4):
            a(f"v_sub_f32 v{NEGM(b)+r}, v{NEGM(b)+r}, v{T+b}")
        a(f"v_mul_f32 v{LS+b}, v{LS+b}, v{T+2+b}")
        for i in range(64):
            a(f"v_mul_f32 v{b*64+i}, v{b*64+i}, v{T+2+b}")
    for x in softmax_ops(sbuf, sbuf): a(x)
    a("s_nop 1")

def dma_ops(par):
    o = [f"s_add_u32 m0, s40, {par*16384}"]
    o += ["s_add_u32 s42, s42, 16384"]
    o += [f"buffer_load_dwordx4 v{VL16}, s[24:27], s42 offen offset:{i*1024} lds" for i in range(4)]
    o += [f"s_add_u32 m0, s41, {par*16384}"]
    o += ["s_add_u32 s43, s43, 16384"]
    o += [f"buffer_load_dwordx4 v{VL16}, s[20:23], s43 offen offset:{i*1024} lds" for i in range(4)]
    return o

def step(a, par, kind, masked, slow_sites):
    has_pv = kind != 'F'; has_qk = kind != 'L'
    mf = []
    rd = []
    if has_pv:
        mf += pv_mfmas(par ^ 1, 0)
        rd += [("v", vread(par ^ 1, i, i), i) for i in range(16)]
    if has_qk:
        mf += qk_mfmas(par ^ 1, 0)
        rd += [("k", kread(par ^ 1, i, i), i) for i in range(16)]
    rd += [("v", vread(par, i, i), i) for i in range(8)]
    rd = rd[8:]
    sc = Sched(mf)
    n = len(mf)
    for i, (kd, ins, fi) in enumerate(rd):
        sc.fix(2 * i, ins)
        if kd == "k" and fi == 15 and (par ^ 1) == 1:
            sc.fix(2 * i + 1, f"v_xor_b32 v{VK}, 0x8000, v{VK}")
        if kd == "v" and fi == 15 and (par ^ 1) == 1:
            sc.fix(2 * i + 1, f"v_xor_b32 v{VV}, 0x8000, v{VV}")
    for g in range(1, n // 8):
        sc.before(8 * g, "s_waitcnt lgkmcnt(4)")
    a("s_waitcnt vmcnt(12) lgkmcnt(4)")
    a("s_barrier")
    sm = softmax_ops(par, par)
    if masked:
        cm, sel = mask_ops(par)
        sm = cm + sel + sm
    chk = [f"v_max_f32 v{T}, v{PS}, v{PS+1}", f"v_cmp_nge_f32 vcc, s39, v{T}"]
    sc.stream(sm + chk, 3 if not masked else 1, n - 1)
    d = dma_ops(par)
    if par == 1:
        d += ["s_xor_b32 s40, s40, 0x8000", "s_xor_b32 s41, s41, 0x8000"]
    d += [f"v_subrev_u32 v{VD}, 32, v{VD}"] if False else []
    sc.stream(d, 0, max(n * 3 // 4, 16))
    sc.emit(a)
    slow = a.label("slow"); back = a.label("back")
    a(f"s_cbranch_vccnz {slow}")
    a(f"{back}:")
    a(f"v_add_f32 v{LS}, v{LS}, v{PS}")
    a(f"v_add_f32 v{LS+1}, v{LS+1}, v{PS+1}")
    a(f"v_subrev_u32 v{VD}, 32, v{VD}")
    slow_sites.append((slow, back, par, has_qk))

def gen_attn(a, label, timing=False, kidx=1):
    a.begin_kernel(label)
    done = a.label("at_done")
    a("s_cmp_ge_u32 s2, 256")
    a(f"s_cbranch_scc1 {done}")
    a("s_load_dwordx2 s[6:7], s[0:1], 112")
    a("s_load_dwordx2 s[4:5], s[0:1], 104")
    if timing: stamp_begin(a)
    a(f"v_lshrrev_b32 v{T}, 6, v0")
    a("v_and_b32 v0, 63, v0")
    a(f"v_readfirstlane_b32 s16, v{T}")
    a(f"v_lshlrev_b32 v{VL16}, 4, v0")
    a(f"v_and_b32 v{T+1}, 15, v0")
    a(f"v_lshrrev_b32 v{T+2}, 4, v0")
    a(f"v_lshlrev_b32 v{T+2}, 2, v{T+2}")
    a(f"v_sub_u32 v{T+8}, v{T+1}, v{T+2}")
    a(f"v_mov_b32 v{T+9}, v{T+1}")
    a(f"v_mov_b32 v{VNINF}, 0xff800000")
    a(f"s_mov_b32 s39, {THR}")
    a("s_and_b32 s12, s2, 7")
    a("s_lshr_b32 s13, s2, 3")
    a("s_lshr_b32 s14, s13, 4")
    a("s_lshl_b32 s12, s12, 1")
    a("s_add_u32 s15, s12, s14")
    a("s_and_b32 s13, s13, 15")
    a("s_and_b32 s14, s13, 7")
    a("s_lshr_b32 s13, s13, 3")
    a("s_lshl_b32 s19, s15, 3")
    a("s_add_u32 s19, s19, s14")
    a("s_lshl_b32 s17, s14, 2")
    a("s_sub_u32 s18, 30, s17")
    a("s_sub_u32 s8, 15, s14")
    a("s_sub_u32 s17, 64, s17")
    a("s_cmp_eq_u32 s13, 0")
    a("s_cselect_b32 s9, 0, s18")
    a("s_cselect_b32 s10, s18, s17")
    a("s_cselect_b32 s11, 0, 2")
    a("s_waitcnt lgkmcnt(0)")
    srd(a, 28, 6, 128 << 20)
    seg = a.label("seg")
    a(f"{seg}:")
    a("s_lshl_b32 s17, s15, 20")
    a("s_add_u32 s20, s6, s17")
    a("s_addc_u32 s21, s7, 0")
    a("s_and_b32 s21, s21, 0xffff")
    a("s_lshl_b32 s22, s10, 14")
    a("s_mov_b32 s23, 0x20000")
    a(f"s_add_u32 s24, s20, {WS_V}")
    a("s_addc_u32 s25, s21, 0")
    a("s_mov_b32 s26, s22")
    a("s_mov_b32 s27, 0x20000")
    a("s_lshl_b32 s18, s8, 2")
    a("s_add_u32 s18, s18, s16")
    a("s_lshl_b32 s18, s18, 14")
    a("s_add_u32 s18, s18, s17")
    a(f"s_add_u32 s18, s18, {WS_Q}")
    for c4 in range(4):
        for i in range(4):
            r = (c4 * 4 + i) * 4
            a(f"buffer_load_dwordx4 {ar(r)}, v{VL16}, s[28:31], s18 offen offset:{i*1024}")
        if c4 < 3: a("s_add_u32 s18, s18, 4096")
    a("s_lshl_b32 s17, s16, 12")
    a("s_lshl_b32 s43, s9, 14")
    a("s_add_u32 s43, s43, s17")
    a("s_mov_b32 s42, s43")
    def dma4(srdn, soff, lds):
        a(f"s_add_u32 m0, s17, {lds}")
        a("s_nop 0")
        for i in range(4):
            a(f"buffer_load_dwordx4 v{VL16}, s[{srdn}:{srdn+3}], {soff} offen offset:{i*1024} lds")
    dma4(20, "s43", 0)
    a("s_add_u32 s43, s43, 16384")
    dma4(20, "s43", 16384)
    dma4(24, "s42", 65536)
    a("s_add_u32 s43, s43, 16384")
    dma4(20, "s43", 32768)
    a("s_add_u32 s42, s42, 16384")
    dma4(24, "s42", 65536 + 16384)
    a("s_add_u32 s43, s43, 16384")
    dma4(20, "s43", 49152)
    a("s_add_u32 s40, s17, 0x18000")
    a("s_mov_b32 s41, s17")
    a(f"v_mov_b32 v{VK}, v{VL16}")
    a(f"v_add_u32 v{VV}, 0x10000, v{VL16}")
    for i in range(128): a(f"v_mov_b32 v{i}, 0")
    a(f"v_mov_b32 v{LS}, 0")
    a(f"v_mov_b32 v{LS+1}, 0")
    a("s_lshl_b32 s18, s8, 2")
    a("s_add_u32 s18, s18, s16")
    a("s_sub_u32 s18, s18, s9")
    a("s_lshl_b32 s18, s18, 5")
    a(f"v_add_u32 v{VD}, s18, v{T+8}")
    a("s_waitcnt vmcnt(20)")
    a("s_barrier")
    if timing: stamp_mid(a, 0)
    for i in range(16): a(kread(0, i, i))
    mf = qk_mfmas(0, 0, zero=True)
    for i, m in enumerate(mf):
        if i % 8 == 0: a(f"s_waitcnt lgkmcnt({12 - (i // 8) * 4})")
        a(m)
    a("s_waitcnt vmcnt(16)")
    a("s_barrier")
    for i in range(8): a(kread(1, i, i))
    cm, sel = mask_ops(0)
    for x in cm + sel: a(x)
    rowmax(a, 0, T)
    for b in range(2):
        for r in range(4):
            a(f"v_sub_f32 v{NEGM(b)+r}, 0, v{T+b}")
        for e in range(2):
            for r in range(4):
                a(f"v_sub_f32 v{S(0,e,b)+r}, v{S(0,e,b)+r}, v{T+b}")
    a("s_sub_u32 s17, s10, s9")
    a("s_lshr_b32 s17, s17, 1")
    a("s_sub_u32 s17, s17, 1")
    a("s_min_u32 s18, s17, 2")
    a("s_cmp_eq_u32 s11, 0")
    a("s_cselect_b32 s37, 0, s18")
    a("s_sub_u32 s36, s17, s37")
    sites = []
    step(a, 0, 'F', False, sites)
    lm = a.label("lm"); lx = a.label("lx"); lmend = a.label("lmend"); lxend = a.label("lxend")
    a("s_cmp_eq_u32 s36, 0")
    a(f"s_cbranch_scc1 {lmend}")
    a(f"{lm}:")
    step(a, 1, 'M', False, sites)
    step(a, 0, 'M', False, sites)
    a("s_sub_u32 s36, s36, 1")
    a("s_cmp_lg_u32 s36, 0")
    a(f"s_cbranch_scc1 {lm}")
    a(f"{lmend}:")
    a("s_cmp_eq_u32 s37, 0")
    a(f"s_cbranch_scc1 {lxend}")
    a(f"{lx}:")
    step(a, 1, 'M', True, sites)
    step(a, 0, 'M', True, sites)
    a("s_sub_u32 s37, s37, 1")
    a("s_cmp_lg_u32 s37, 0")
    a(f"s_cbranch_scc1 {lx}")
    a(f"{lxend}:")
    step(a, 1, 'L', True, sites)
    mf = pv_mfmas(1, 0)
    for i in range(8, 16): a(vread(1, i, i))
    for i, m in enumerate(mf):
        if i % 8 == 0: a(f"s_waitcnt lgkmcnt({12 - (i // 8) * 4})")
        a(m)
    if timing: stamp_mid(a, 1)
    a("s_waitcnt vmcnt(0)")
    xlane_reduce(a, "v_add_f32", [LS, LS + 1], T)
    a("s_nop 7")
    a(f"s_mul_i32 s17, s19, {4*PART_W}")
    a(f"s_mul_i32 s18, s16, {PART_W}")
    a("s_add_u32 s17, s17, s18")
    a(f"s_add_u32 s17, s17, {WS_PART}")
    fin = a.label("fin"); nomerge = a.label("nomerge")
    a("s_cmp_lg_u32 s11, 0")
    a(f"s_cbranch_scc1 {fin}")
    for c4 in range(8):
        for i in range(4):
            a(f"buffer_store_dwordx4 {vr((c4*4+i)*4)}, v{VL16}, s[28:31], s17 offen offset:{i*1024} sc1")
        a("s_add_u32 s17, s17, 4096")
    a(f"v_mov_b32 v{T}, v{NEGM(0)}")
    a(f"v_mov_b32 v{T+1}, v{NEGM(1)}")
    a(f"v_mov_b32 v{T+2}, v{LS}")
    a(f"v_mov_b32 v{T+3}, v{LS+1}")
    a(f"buffer_store_dwordx4 {vr(T)}, v{VL16}, s[28:31], s17 offen sc1")
    a("s_waitcnt vmcnt(0)")
    a("s_barrier")
    nf = a.label("noflag")
    a("s_cmp_lg_u32 s16, 0")
    a(f"s_cbranch_scc1 {nf}")
    srd(a, 32, 4, 256)
    a("s_lshr_b32 s17, s19, 1")
    a("s_lshl_b32 s17, s17, 2")
    a("s_and_b32 s18, s19, 1")
    a("s_lshl_b32 s18, s18, 4")
    a("s_lshl_b32 s18, 1, s18")
    a(f"v_mov_b32 v{T}, s18")
    a(f"v_mov_b32 v{T+1}, 0")
    a("s_mov_b64 exec, 1")
    a(f"buffer_atomic_or v{T}, v{T+1}, s[32:35], s17 offen sc1")
    a("s_mov_b64 exec, -1")
    a(f"{nf}:")
    a("s_mov_b32 s8, s14")
    a("s_mov_b32 s9, 0")
    a("s_lshl_b32 s10, s14, 2")
    a("s_add_u32 s10, s10, 4")
    a("s_mov_b32 s11, 1")
    a(f"s_branch {seg}")
    a(f"{fin}:")
    a("s_lshl_b32 s18, s8, 2")
    a("s_add_u32 s18, s18, s16")
    a("s_lshl_b32 s18, s18, 7")
    a(f"s_add_u32 s18, s18, {WS_G}")
    a(f"v_lshlrev_b32 v{T+4}, 2, v{T+9}")
    a(f"buffer_load_dword v{T+6}, v{T+4}, s[28:31], s18 offen")
    a(f"buffer_load_dword v{T+7}, v{T+4}, s[28:31], s18 offen offset:64")
    a("s_cmp_eq_u32 s11, 1")
    a(f"s_cbranch_scc1 {nomerge}")
    srd(a, 32, 4, 256)
    a("s_lshr_b32 s36, s19, 1")
    a("s_lshl_b32 s36, s36, 2")
    a("s_and_b32 s18, s19, 1")
    a("s_lshl_b32 s18, s18, 4")
    a(f"v_mov_b32 v{T+1}, 0")
    poll = a.label("poll")
    a(f"{poll}:")
    a(f"buffer_load_dword v{T}, v{T+1}, s[32:35], s36 offen sc1")
    a("s_waitcnt vmcnt(0)")
    a(f"v_readfirstlane_b32 s37, v{T}")
    a("s_lshr_b32 s37, s37, s18")
    a("s_and_b32 s37, s37, 1")
    a("s_cmp_eq_u32 s37, 0")
    a(f"s_cbranch_scc1 {poll}")
    a("s_barrier")
    a("s_add_u32 s18, s17, 32768")
    a(f"buffer_load_dwordx4 {vr(T)}, v{VL16}, s[28:31], s18 offen sc1")
    for c4 in range(8):
        for i in range(4):
            a(f"buffer_load_dwordx4 {ar(128+(c4*4+i)*4)}, v{VL16}, s[28:31], s17 offen offset:{i*1024} sc1")
        a("s_add_u32 s17, s17, 4096")
    a("s_waitcnt vmcnt(32)")
    FA, FB = E(0, 0), E(0, 0) + 2
    for b in range(2):
        a(f"v_min_f32 v{T+4}, v{NEGM(b)}, v{T+b}")
        a(f"v_sub_f32 v{FA+b}, v{T+4}, v{NEGM(b)}")
        a(f"v_sub_f32 v{FB+b}, v{T+4}, v{T+b}")
    for b in range(2):
        a(f"v_exp_f32 v{FA+b}, v{FA+b}")
        a(f"v_exp_f32 v{FB+b}, v{FB+b}")
    a("s_nop 0")
    for b in range(2):
        a(f"v_mul_f32 v{LS+b}, v{LS+b}, v{FA+b}")
        a(f"v_fmac_f32 v{LS+b}, v{T+2+b}, v{FB+b}")
    for c in range(32):
        a(f"s_waitcnt vmcnt({31-c})")
        b = c // 16
        for r in range(4):
            a(f"v_accvgpr_read_b32 v{S(0,0,0)+(c%2)*4+r}, a{128+c*4+r}")
        for r in range(4):
            a(f"v_mul_f32 v{c*4+r}, v{c*4+r}, v{FA+b}")
        for r in range(4):
            a(f"v_fmac_f32 v{c*4+r}, v{S(0,0,0)+(c%2)*4+r}, v{FB+b}")
    a(f"{nomerge}:")
    a("s_waitcnt vmcnt(0)")
    for b in range(2):
        a(f"v_rcp_f32 v{T+b}, v{LS+b}")
    a("s_nop 0")
    for b in range(2):
        a(f"v_mul_f32 v{T+b}, v{T+b}, v{T+6+b}")
    a("s_lshl_b32 s17, s8, 2")
    a("s_add_u32 s17, s17, s16")
    a(f"s_mul_i32 s17, s17, {2*CF_PITCH}")
    a("s_lshl_b32 s18, s15, 13")
    a("s_add_u32 s17, s17, s18")
    a(f"s_add_u32 s17, s17, {WS_C}")
    n = 0
    for b in range(2):
        for t in range(8):
            r0 = Oreg(b, 2 * t)
            for r in range(8):
                a(f"v_mul_f32 v{r0+r}, v{r0+r}, v{T+b}")
            d = S(0, 0, 0) + (n % 4) * 4
            for p in range(4):
                a(f"v_cvt_pk_bf16_f32 v{d+p}, v{r0+2*p}, v{r0+2*p+1}")
            a(f"buffer_store_dwordx4 {vr(d)}, v{VL16}, s[28:31], s17 offen offset:{(t%4)*1024} sc1")
            if t % 4 == 3:
                a(f"s_add_u32 s17, s17, {4096 if t == 3 else CF_PITCH - 4096}")
            n += 1
    if timing:
        stamp_mid(a, 2)
        stamp_end(a, kidx, done)
    a(f"{done}:")
    a("s_endpgm")
    for (slow, back, par, has_next) in sites:
        a(f"{slow}:")
        slow_path(a, par, has_next)
        a(f"s_branch {back}")
    a.end_kernel(label, 512, 256, 102)
```

```python
from asmlib import *
from attn import Sched, vr, ar, xlane_reduce, WS_G
from fin import WS_X1
import struct, math
WS_XN = 106 << 20
def f2u(x): return "0x%08x" % struct.unpack("<I", struct.pack("<f", x))[0]
GC0 = -2 * math.sqrt(2 / math.pi) * math.log2(math.e)
GC1 = GC0 * 0.044715

def gelu_ops(regs, tmp, sc0, sc1, post=None):
    n = len(regs)
    o = []
    for i, r in enumerate(regs): o.append(f"v_mul_f32 v{tmp+i}, v{r}, v{r}")
    for i, r in enumerate(regs): o.append(f"v_fma_f32 v{tmp+i}, v{tmp+i}, {sc1}, {sc0}")
    for i, r in enumerate(regs): o.append(f"v_mul_f32 v{tmp+i}, v{tmp+i}, v{r}")
    for i, r in enumerate(regs): o.append(f"v_exp_f32 v{tmp+i}, v{tmp+i}")
    if post is not None:
        for i, r in enumerate(regs): o.append(f"v_mul_f32 v{r}, v{r}, v{post}")
    for i, r in enumerate(regs): o.append(f"v_add_f32 v{tmp+i}, 1.0, v{tmp+i}")
    for i, r in enumerate(regs): o.append(f"v_rcp_f32 v{tmp+i}, v{tmp+i}")
    o.append("s_nop 0")
    for i, r in enumerate(regs): o.append(f"v_mul_f32 v{r}, v{r}, v{tmp+i}")
    return o

SLOT = 28672
XN = 4 * SLOT
ST = XN + 43008
HP = 928

def gen_b12(a, LANE, sblk, wave="s16", timing=False):
    L = f"v{LANE}"
    T = 200
    WG = 184
    WR = 144
    XRES = 160
    XRES = 216
    VC1 = 191
    a("s_load_dwordx2 s[44:45], s[0:1], 0")
    a("s_load_dwordx4 s[48:51], s[0:1], 56")
    a("s_load_dwordx2 s[46:47], s[0:1], 88")
    for p in range(7):
        a(f"v_add_u32 v{T}, {p*64}, {L}")
        a(f"v_mul_u32_u24 v{T+1}, 1171, v{T}")
        a(f"v_lshrrev_b32 v{T+1}, 16, v{T+1}")
        a(f"v_mul_u32_u24 v{T+2}, 56, v{T+1}")
        a(f"v_sub_u32 v{T}, v{T}, v{T+2}")
        a(f"v_and_b32 v{T+3}, 2, v{T+1}")
        a(f"s_and_b32 s17, {wave}, 1")
        a(f"s_lshl_b32 s17, s17, 2")
        a(f"v_or_b32 v{T+3}, s17, v{T+3}")
        a(f"v_xor_b32 v{T}, v{T}, v{T+3}")
        a(f"v_add_u32 v{T}, v{T}, v{T+2}")
        a(f"v_lshlrev_b32 v{WG+p}, 4, v{T}")
    a(f"s_mul_i32 s18, {wave}, 7168")
    a("s_waitcnt lgkmcnt(0)")
    srd(a, 52, 44, SIZES['x'])
    srd(a, 56, 48, SIZES['w1'])
    srd(a, 60, 50, SIZES['w2'])
    srd(a, 64, 46, SIZES['gw'])
    a(f"v_and_b32 v{T}, 15, {L}")
    a(f"s_lshl_b32 s17, {sblk}, 5")
    a(f"s_lshl_b32 s19, {wave}, 4")
    a("s_add_u32 s19, s19, s17")
    a("s_sub_u32 s19, s19, 8")
    a(f"s_cmp_eq_u32 {wave}, 3")
    a("s_cselect_b32 s19, s17, s19")
    a(f"v_add_u32 v{T}, s19, v{T}")
    a("s_movk_i32 s17, 896")
    a(f"v_mul_lo_u32 v{T}, v{T}, s17")
    a(f"v_lshrrev_b32 v{T+1}, 4, {L}")
    a(f"v_lshlrev_b32 v{T+1}, 4, v{T+1}")
    a(f"v_add_u32 v{T}, v{T}, v{T+1}")
    for t in range(14):
        a(f"buffer_load_dwordx4 {vr(t*4)}, v{T}, s[52:55], 0 offen offset:{t*64}")
    def dma(s):
        o = []
        sr, ss = (56, s) if s < 14 else (60, s - 14)
        o.append(f"s_add_u32 s20, s18, {ss*SLOT}")
        for p in range(7):
            o.append(f"s_add_u32 m0, s18, {(s%4)*SLOT + p*1024}")
            o.append("s_nop 0")
            o.append(f"buffer_load_dwordx4 v{WG+p}, s[{sr}:{sr+3}], s20 offen lds")
        return o
    g3 = a.label("b_gate"); j1 = a.label("b_j1")
    a(f"s_cmp_eq_u32 {wave}, 3")
    a(f"s_cbranch_scc1 {g3}")
    for s in range(3):
        for x in dma(s): a(x)
    a("s_waitcnt vmcnt(21)")
    F = 56
    for i in range(56):
        a(f"v_lshlrev_b32 v{F+2*i}, 16, v{i}")
        a(f"v_and_b32 v{F+2*i+1}, 0xffff0000, v{i}")
    for q in range(4):
        a(f"v_add_f32 v{T+q}, v{F+q}, v{F+4+q}")
    for i in range(8, 112):
        a(f"v_add_f32 v{T+(i%4)}, v{T+(i%4)}, v{F+i}")
    a(f"v_add_f32 v{T}, v{T}, v{T+1}")
    a(f"v_add_f32 v{T+2}, v{T+2}, v{T+3}")
    a(f"v_add_f32 v{T}, v{T}, v{T+2}")
    xlane_reduce(a, "v_add_f32", [T], T + 1)
    a(f"v_mul_f32 v{T+4}, {f2u(1/448)}, v{T}")
    for i in range(112):
        a(f"v_sub_f32 v{F+i}, v{F+i}, v{T+4}")
    for q in range(4):
        a(f"v_mul_f32 v{T+q}, v{F+q}, v{F+q}")
    for i in range(4, 112):
        a(f"v_fmac_f32 v{T+(i%4)}, v{F+i}, v{F+i}")
    a(f"v_add_f32 v{T}, v{T}, v{T+1}")
    a(f"v_add_f32 v{T+2}, v{T+2}, v{T+3}")
    a(f"v_add_f32 v{T}, v{T}, v{T+2}")
    xlane_reduce(a, "v_add_f32", [T], T + 1)
    a(f"v_mov_b32 v{T+1}, {f2u(1e-5)}")
    a(f"v_fmac_f32 v{T+1}, {f2u(1/448)}, v{T}")
    a(f"v_rsq_f32 v{T+1}, v{T+1}")
    a(f"s_mul_i32 s17, {wave}, 14336")
    a(f"s_add_u32 s17, s17, {XN}")
    a(f"v_lshl_add_u32 v{T+2}, {L}, 4, s17")
    for t in range(14):
        for i in range(8):
            a(f"v_mul_f32 v{F+8*t+i}, v{F+8*t+i}, v{T+1}")
        for p in range(4):
            a(f"v_cvt_pk_bf16_f32 v{4*t+p}, v{F+8*t+2*p}, v{F+8*t+2*p+1}")
        a(f"ds_write_b128 v{T+2}, {vr(4*t)} offset:{t*1024}")
    a(f"s_branch {j1}")
    a(f"{g3}:")
    a(f"v_add_u32 v{T}, {16*896}, v{T}")
    for t in range(14):
        a(f"buffer_load_dwordx4 {vr(56+t*4)}, v{T}, s[52:55], 0 offen offset:{t*64}")
    for t in range(14):
        a(f"buffer_load_dwordx4 {vr(112+t*4) if t < 4 else ar((t-4)*4)}, v{T+1}, s[64:67], 0 offen offset:{t*64}")
    for s in range(3):
        for x in dma(s): a(x)
    a("s_waitcnt vmcnt(21)")
    for q in range(4): a(f"v_mov_b32 v{T+q}, 0")
    for i in range(56):
        if i < 16: src = 112 + i
        else:
            a(f"v_accvgpr_read_b32 v{T+8}, a{i-16}"); src = T + 8
        a(f"v_lshlrev_b32 v{T+4}, 16, v{src}")
        a(f"v_and_b32 v{T+5}, 0xffff0000, v{src}")
        for tl in range(2):
            a(f"v_lshlrev_b32 v{T+6}, 16, v{tl*56+i}")
            a(f"v_and_b32 v{T+7}, 0xffff0000, v{tl*56+i}")
            a(f"v_fmac_f32 v{T+2*tl}, v{T+4}, v{T+6}")
            a(f"v_fmac_f32 v{T+2*tl+1}, v{T+5}, v{T+7}")
    a(f"v_add_f32 v{T}, v{T}, v{T+1}")
    a(f"v_add_f32 v{T+1}, v{T+2}, v{T+3}")
    xlane_reduce(a, "v_add_f32", [T, T + 1], T + 2)
    for q in range(2):
        a(f"v_mul_f32 v{T+q}, {f2u(-math.log2(math.e))}, v{T+q}")
    for q in range(2):
        a(f"v_exp_f32 v{T+q}, v{T+q}")
    a("s_nop 0")
    for q in range(2):
        a(f"v_add_f32 v{T+q}, 1.0, v{T+q}")
    for q in range(2):
        a(f"v_rcp_f32 v{T+q}, v{T+q}")
    a(f"v_and_b32 v{T+2}, 15, {L}")
    a(f"v_lshlrev_b32 v{T+2}, 2, v{T+2}")
    a(f"v_add_u32 v{T+3}, {ST}, v{T+2}")
    a(f"ds_write_b32 v{T+3}, v{T}")
    a(f"ds_write_b32 v{T+3}, v{T+1} offset:64")
    a(f"s_lshl_b32 s17, {sblk}, 7")
    a(f"s_add_u32 s17, s17, {WS_G}")
    a(f"buffer_store_dword v{T}, v{T+2}, s[28:31], s17 offen sc1")
    a(f"buffer_store_dword v{T+1}, v{T+2}, s[28:31], s17 offen offset:64 sc1")
    a("s_waitcnt vmcnt(0)")
    a(f"{j1}:")
    a(f"v_lshrrev_b32 v{T}, 4, {L}")
    a(f"v_lshlrev_b32 v{T}, 3, v{T}")
    a(f"v_bfe_u32 v{T+1}, {L}, 2, 2")
    a(f"v_add_u32 v{T}, v{T}, v{T+1}")
    a(f"v_mul_u32_u24 v{T}, 896, v{T}")
    a(f"v_and_b32 v{T+1}, 3, {L}")
    a(f"v_lshl_add_u32 v{T}, v{T+1}, 3, v{T}")
    a(f"v_bfe_u32 v{T+1}, {L}, 3, 2")
    a(f"s_mul_i32 s17, {wave}, 7")
    for ct in range(7):
        a(f"s_add_u32 s19, s17, {ct}")
        a(f"v_xor_b32 v{T+2}, s19, v{T+1}")
        a(f"v_lshl_add_u32 v{WR+ct}, v{T+2}, 5, v{T}")
        a(f"v_add_u32 v{WR+7+ct}, {2*SLOT}, v{WR+ct}")
    a("s_waitcnt vmcnt(14) lgkmcnt(0)")
    a("s_barrier")
    if timing: stamp_mid(a, 3)
    a(f"v_lshlrev_b32 v{T}, 4, {L}")
    a(f"v_add_u32 v{T}, {XN}, v{T}")
    def wreads(s):
        o = []
        sl = s % 4
        for ct in range(7):
            for hf in range(2):
                r = 168 + (s & 1) * 28 + ct * 4 + hf * 2
                o.append(f"ds_read_b64_tr_b16 a[{r}:{r+1}], v{WR+7*(sl>>1)+ct} offset:{(sl&1)*SLOT + hf*3584}")
        return o
    for x in wreads(0): a(x)
    for t in range(14):
        for x in range(3):
            a(f"ds_read_b128 {ar((t*3+x)*4)}, v{T} offset:{x*14336 + t*1024}")
    def gstep(s, nt):
        t = s % 14
        mf = []
        for ct in range(7):
            for x in range(nt):
                d = vr((x * 7 + ct) * 4)
                mf.append(f"v_mfma_f32_16x16x32_bf16 {d}, {ar(168+(s&1)*28+ct*4)}, {ar((t*nt+x)*4)}, {d if t else '0'}")
        sc = Sched(mf, cap=12)
        if s + 1 < 28:
            nout = min(27, s + 2) - (s + 1)
            a(f"s_waitcnt vmcnt({7*nout + extra[0]}) lgkmcnt(0)")
            a("s_barrier")
            sc.stream(wreads(s + 1), 0, len(mf))
            if s + 3 < 28:
                sc.stream([x for x in dma(s + 3)], 0, len(mf))
        else:
            a("s_waitcnt lgkmcnt(0)")
        sc.emit(a)
    extra = [0]
    for s in range(14): gstep(s, 3)
    if timing: stamp_mid(a, 4)
    a(f"v_and_b32 v{T}, 15, {L}")
    a(f"v_mul_u32_u24 v{T}, 448, v{T}")
    a(f"v_lshrrev_b32 v{T+1}, 4, {L}")
    a(f"v_lshl_add_u32 v{T+10}, v{T+1}, 2, v{T}")
    a(f"s_mul_i32 s21, {sblk}, {32*448}")
    a(f"s_mul_i32 s17, {wave}, 112")
    a("s_add_u32 s21, s21, s17")
    a(f"s_mov_b32 s22, {f2u(GC0)}")
    a(f"v_mov_b32 v{VC1}, {f2u(GC1)}")
    a(f"s_lshr_b32 s17, {wave}, 1")
    a("s_add_u32 s17, s17, 1")
    a("s_sub_u32 s19, 0, s17")
    a(f"s_bitcmp1_b32 {wave}, 0")
    a("s_cselect_b32 s17, s19, s17")
    a("s_sub_u32 s17, s17, 8")
    a(f"v_and_b32 v{T+11}, 15, {L}")
    a(f"v_add_u32 v{T+11}, s17, v{T+11}")
    a(f"v_mul_i32_i24 v{T+12}, {HP}, v{T+11}")
    a(f"v_lshl_add_u32 v{T+12}, v{T+1}, 3, v{T+12}")
    a(f"s_mul_i32 s17, {wave}, 224")
    a(f"s_add_u32 s17, s17, {XN}")
    a(f"v_add_u32 v{T+12}, s17, v{T+12}")
    for x in range(3):
        regs = list(range(x * 28, x * 28 + 28))
        for o in gelu_ops(regs, 84, "s22", f"v{VC1}"): a(o)
        for ct in range(7):
            r = x * 28 + ct * 4
            a(f"v_cvt_pk_bf16_f32 v{84+2*ct}, v{r}, v{r+1}")
            a(f"v_cvt_pk_bf16_f32 v{85+2*ct}, v{r+2}, v{r+3}")
        a(f"v_add_u32 v{T}, {16*x}, v{T+11}")
        a(f"v_cmp_gt_u32 vcc, 32, v{T}")
        a("s_and_saveexec_b64 s[24:25], vcc")
        for ct in range(7):
            a(f"ds_write_b64 v{T+12}, v[{84+2*ct}:{85+2*ct}] offset:{x*16*HP + ct*32}")
        a("s_mov_b64 exec, s[24:25]")
    a(f"v_lshlrev_b32 v{T}, 1, v{T+10}")
    a("s_lshl_b32 s17, s21, 1")
    for x in range(2):
        for ct in range(7):
            r = XRES + (x * 7 + ct) * 2
            a(f"buffer_load_dwordx2 v[{r}:{r+1}], v{T}, s[52:55], s17 offen offset:{ct*32}")
        a(f"s_add_u32 s17, s17, {16*896}")
    a("s_waitcnt lgkmcnt(0)")
    a("s_barrier")
    a(f"v_and_b32 v{T}, 15, {L}")
    a(f"v_mul_u32_u24 v{T}, {HP}, v{T}")
    a(f"v_lshrrev_b32 v{T+1}, 4, {L}")
    a(f"v_lshl_add_u32 v{T}, v{T+1}, 4, v{T}")
    a(f"v_add_u32 v{T}, {XN}, v{T}")
    for t in range(14):
        for x in range(2):
            a(f"ds_read_b128 {ar((t*2+x)*4)}, v{T} offset:{x*16*HP + t*64}")
    if timing: stamp_mid(a, 5)
    for s in range(14, 28):
        extra[0] = 14 if s == 14 else 0
        if s == 15: extra[0] = 0
        gstep(s, 2)
    if timing: stamp_mid(a, 6)
    a("s_waitcnt vmcnt(0)")
    a(f"v_and_b32 v{T+4}, 15, {L}")
    a(f"v_lshlrev_b32 v{T+4}, 2, v{T+4}")
    a(f"v_add_u32 v{T+4}, {ST}, v{T+4}")
    a(f"ds_read_b32 v{T+6}, v{T+4}")
    a(f"ds_read_b32 v{T+7}, v{T+4} offset:64")
    a(f"s_lshl_b32 s17, {wave}, 7")
    a(f"v_add_u32 v{T+5}, s17, v{T+4}")
    a("s_nop 2")
    for i in range(28):
        a(f"v_lshlrev_b32 v{T}, 16, v{XRES+i}")
        a(f"v_and_b32 v{T+1}, 0xffff0000, v{XRES+i}")
        a(f"v_add_f32 v{2*i}, v{2*i}, v{T}")
        a(f"v_add_f32 v{2*i+1}, v{2*i+1}, v{T+1}")
    def rowred(src, sq, base):
        for x in range(2):
            for i in range(28):
                r = src + x * 28 + i
                if sq:
                    a(f"v_mul_f32 v{T+x}, v{r}, v{r}" if i == 0 else f"v_fmac_f32 v{T+x}, v{r}, v{r}")
                elif i == 1: a(f"v_add_f32 v{T+x}, v{r-1}, v{r}")
                elif i > 1: a(f"v_add_f32 v{T+x}, v{T+x}, v{r}")
        xlane_reduce(a, "v_add_f32", [T, T + 1], T + 2)
        a(f"ds_write_b32 v{T+5}, v{T} offset:{base}")
        a(f"ds_write_b32 v{T+5}, v{T+1} offset:{base+64}")
        a("s_waitcnt lgkmcnt(0)")
        a("s_barrier")
        for x in range(2):
            for w in range(4):
                a(f"ds_read_b32 v{120+x*4+w}, v{T+4} offset:{base + w*128 + x*64}")
        a("s_waitcnt lgkmcnt(0)")
        for x in range(2):
            a(f"v_add_f32 v{120+x*4}, v{120+x*4}, v{121+x*4}")
            a(f"v_add_f32 v{122+x*4}, v{122+x*4}, v{123+x*4}")
            a(f"v_add_f32 v{T+x}, v{120+x*4}, v{122+x*4}")
    rowred(0, False, 128)
    for x in range(2):
        a(f"v_mul_f32 v{T+x}, {f2u(1/448)}, v{T+x}")
        a(f"v_sub_f32 v{T+6+x}, 1.0, v{T+6+x}")
    for x in range(2):
        for i in range(28):
            a(f"v_sub_f32 v{56+x*28+i}, v{x*28+i}, v{T+x}")
            a(f"v_mul_f32 v{x*28+i}, v{x*28+i}, v{T+6+x}")
    a(f"v_lshlrev_b32 v{T+8}, 2, v{T+10}")
    a("s_lshl_b32 s17, s21, 2")
    a(f"s_add_u32 s17, s17, {WS_X1}")
    for x in range(2):
        for ct in range(7):
            a(f"buffer_store_dwordx4 {vr((x*7+ct)*4)}, v{T+8}, s[28:31], s17 offen offset:{ct*64} sc1")
        a(f"s_add_u32 s17, s17, {16*448*4}")
    rowred(56, True, 640)
    for x in range(2):
        a(f"v_mov_b32 v{T+2+x}, {f2u(1e-5)}")
        a(f"v_fmac_f32 v{T+2+x}, {f2u(1/448)}, v{T+x}")
    for x in range(2):
        a(f"v_rsq_f32 v{T+2+x}, v{T+2+x}")
    a(f"v_lshlrev_b32 v{T+8}, 1, v{T+10}")
    a("s_lshl_b32 s17, s21, 1")
    a(f"s_add_u32 s17, s17, {WS_XN}")
    for x in range(2):
        for i in range(28):
            a(f"v_mul_f32 v{56+x*28+i}, v{56+x*28+i}, v{T+2+x}")
        for ct in range(7):
            r = 56 + x * 28 + ct * 4; d = XRES + (x * 7 + ct) * 2
            a(f"v_cvt_pk_bf16_f32 v{d}, v{r}, v{r+1}")
            a(f"v_cvt_pk_bf16_f32 v{d+1}, v{r+2}, v{r+3}")
            a(f"buffer_store_dwordx2 v[{d}:{d+1}], v{T+8}, s[28:31], s17 offen offset:{ct*32} sc1")
        a(f"s_add_u32 s17, s17, {16*896}")
    a("s_waitcnt vmcnt(0)")
    a("s_barrier")
    if timing: stamp_mid(a, 7)
```

```python
from asmlib import *
from attn import WS_C, CF_PITCH, Sched, vr, ar
WS_X1 = 102 << 20

def gen_fin(a, label, timing=False, kidx=2, D=6):
    NS = 46
    RING = 8
    ACC = 0
    WF = 64
    VL16, VWG, T = 96, 97, 104
    VWR = 98
    a.begin_kernel(label)
    done = a.label("f_done")
    a("s_cmp_ge_u32 s2, 224")
    a(f"s_cbranch_scc1 {done}")
    a("s_load_dwordx2 s[6:7], s[0:1], 112")
    a("s_load_dwordx2 s[4:5], s[0:1], 40")
    a("s_load_dwordx2 s[8:9], s[0:1], 80")
    a("s_load_dwordx2 s[10:11], s[0:1], 96")
    if timing: stamp_begin(a)
    a(f"v_lshrrev_b32 v{T}, 6, v0")
    a(f"v_and_b32 v{T+8}, 63, v0")
    a(f"v_readfirstlane_b32 s16, v{T}")
    L = f"v{T+8}"
    a(f"v_lshlrev_b32 v{VL16}, 4, {L}")
    a("s_and_b32 s12, s2, 7")
    a("s_lshr_b32 s13, s2, 3")
    a("s_and_b32 s14, s13, 3")
    a("s_lshl_b32 s12, s12, 2")
    a("s_add_u32 s14, s14, s12")
    a("s_lshr_b32 s15, s13, 2")
    a(f"v_lshrrev_b32 v{T}, 3, {L}")
    a(f"v_mul_u32_u24 v{T}, 896, v{T}")
    a(f"v_lshrrev_b32 v{T+1}, 4, {L}")
    a(f"v_lshlrev_b32 v{T+1}, 1, v{T+1}")
    a(f"v_and_b32 v{T+2}, 7, {L}")
    a(f"v_xor_b32 v{T+1}, v{T+1}, v{T+2}")
    a(f"v_lshl_add_u32 v{VWG}, v{T+1}, 4, v{T}")
    a(f"v_lshrrev_b32 v{T}, 2, {L}")
    a(f"v_lshlrev_b32 v{T}, 7, v{T}")
    a(f"v_and_b32 v{T+1}, 3, {L}")
    a(f"v_lshl_add_u32 v{T}, v{T+1}, 3, v{T}")
    a("s_lshl_b32 s34, s16, 15")
    a(f"v_add_u32 v{T}, s34, v{T}")
    a(f"v_bfe_u32 v{T+1}, {L}, 3, 2")
    for ct in range(4):
        a(f"v_xor_b32 v{T+2}, {ct}, v{T+1}")
        a(f"v_lshl_add_u32 v{VWR+ct}, v{T+2}, 5, v{T}")
    a("s_waitcnt lgkmcnt(0)")
    srd(a, 28, 6, 128 << 20)
    srd(a, 20, 4, SIZES['wo'])
    srd(a, 24, 8, SIZES['w4'])
    srd(a, 44, 10, SIZES['out'])
    a(f"s_mul_i32 s36, s14, {4*CF_PITCH}")
    a("s_lshl_b32 s17, s16, 10")
    a("s_add_u32 s36, s36, s17")
    a(f"s_add_u32 s36, s36, {WS_C}")
    a(f"s_mul_i32 s33, s16, {32*896}")
    a("s_lshl_b32 s17, s15, 7")
    a("s_add_u32 s33, s33, s17")
    def loads(s):
        o = []
        slot = s % RING
        for x in range(4):
            o.append(f"s_add_u32 s40, s36, {x*CF_PITCH + s*4096}")
            o.append(f"buffer_load_dwordx4 {ar(slot*16 + x*4)}, v{VL16}, s[28:31], s40 offen")
        sr, ss = (20, s) if s < 32 else (24, s - 32)
        for i in range(4):
            o.append(f"s_add_u32 m0, s34, {slot*4096 + i*1024}")
            o.append(f"s_add_u32 s41, s33, {(ss*128 + i*8)*896}")
            o.append(f"buffer_load_dwordx4 v{VWG}, s[{sr}:{sr+3}], s41 offen lds")
        return o
    def wreads(s):
        slot = s % RING
        o = []
        for ct in range(4):
            for hf in range(2):
                r = WF + (s & 1) * 16 + ct * 4 + hf * 2
                o.append(f"ds_read_b64_tr_b16 v[{r}:{r+1}], v{VWR+ct} offset:{slot*4096 + hf*2048}")
        return o
    for s in range(D):
        for x in loads(s): a(x)
    a(f"v_and_b32 v{T}, 15, {L}")
    a(f"v_mul_u32_u24 v{T}, 448, v{T}")
    a(f"v_lshrrev_b32 v{T+1}, 4, {L}")
    a(f"v_lshl_add_u32 v{T+9}, v{T+1}, 2, v{T}")
    a("s_lshl_b32 s17, s14, 2")
    a("s_add_u32 s17, s17, s16")
    a(f"s_mul_i32 s17, s17, {16*448}")
    a("s_lshl_b32 s18, s15, 6")
    a("s_add_u32 s42, s17, s18")
    a(f"s_waitcnt vmcnt({8*(D-1)})")
    if timing: stamp_mid(a, 0)
    for x in wreads(0): a(x)
    for s in range(NS):
        mf = []
        slot = s % RING
        for x in range(4):
            for w in range(4):
                C = vr((x*4+w)*4) if s else "0"
                mf.append(f"v_mfma_f32_16x16x32_bf16 {vr((x*4+w)*4)}, {vr(WF+(s&1)*16+w*4)}, {ar(slot*16+x*4)}, {C}")
        sc = Sched(mf, cap=12)
        nxt = min(NS - 1, s + D - 1) - (s + 1)
        if s + 1 < NS:
            a(f"s_waitcnt vmcnt({8*nxt}) lgkmcnt(0)")
            sc.stream(wreads(s + 1), 0, 8)
        else:
            a("s_waitcnt lgkmcnt(0)")
        if s + D < NS:
            sc.stream(loads(s + D), 0, 16)
        sc.emit(a)
    if timing: stamp_mid(a, 1)
    a(f"v_lshlrev_b32 v{T}, 2, v{T+9}")
    a("s_lshl_b32 s17, s42, 2")
    a(f"s_add_u32 s17, s17, {WS_X1}")
    for ct in range(4):
        a(f"buffer_load_dwordx4 {vr(80+ct*4)}, v{T}, s[28:31], s17 offen offset:{ct*64}")
    a(f"v_add_u32 v{T+1}, s34, v{VL16}")
    a("s_nop 4")
    for i in range(16):
        a(f"ds_write_b128 v{T+1}, {vr(i*4)} offset:{i*1024}")
    a("s_waitcnt lgkmcnt(0)")
    a("s_barrier")
    a("s_lshl_b32 s17, s16, 12")
    a(f"v_add_u32 v{T+1}, s17, v{VL16}")
    a(f"v_add_u32 v{T+2}, 0x10000, v{T+1}")
    for w2 in range(4):
        for ct in range(4):
            ad = T + 1 if w2 < 2 else T + 2
            a(f"ds_read_b128 {vr((w2*4+ct)*4)}, v{ad} offset:{(w2&1)*32768 + ct*1024}")
    a("s_waitcnt lgkmcnt(0) vmcnt(0)")
    for i in range(16):
        a(f"v_add_f32 v{i}, v{i}, v{16+i}")
        a(f"v_add_f32 v{32+i}, v{32+i}, v{48+i}")
        a(f"v_add_f32 v{i}, v{i}, v{80+i}")
        a(f"v_add_f32 v{i}, v{i}, v{32+i}")
    a(f"v_lshlrev_b32 v{T}, 1, v{T+9}")
    a("s_lshl_b32 s17, s42, 1")
    for ct in range(4):
        a(f"v_cvt_pk_bf16_f32 v{64+ct*2}, v{ct*4}, v{ct*4+1}")
        a(f"v_cvt_pk_bf16_f32 v{65+ct*2}, v{ct*4+2}, v{ct*4+3}")
        a(f"buffer_store_dwordx2 v[{64+ct*2}:{65+ct*2}], v{T}, s[44:47], s17 offen offset:{ct*32}")
    if timing:
        stamp_mid(a, 2)
        stamp_end(a, kidx, done)
    a(f"{done}:")
    a("s_endpgm")
    a.end_kernel(label, 256, 128, 102)
```

```python
from asmlib import *

WS_K = 0
WS_V = 16 << 20
WS_Q = 32 << 20

def spread(a, mfmas, fillers, start=0, end=None, maxper=2):
    n = len(mfmas)
    if end is None: end = n
    f = list(fillers)
    g = end - start
    k = 0
    for i, m in enumerate(mfmas):
        a(m)
        if start <= i < end:
            tgt = ((i - start + 1) * len(f) + g - 1) // g
            while k < tgt:
                a(f[k]); k += 1
    while k < len(f):
        a(f[k]); k += 1

class G:
    ACCV = 0
    LANE = 255
    XR = 129
    WR = 131
    XG = 139
    WG = 140
    T = 141
    NV = 192
def acc(i):
    return f"v[{4*i}:{4*i+3}]" if i < 32 else f"a[{4*(i-32)}:{4*(i-32)+3}]"
def xf(s, i): r = 128 + s * 64 + i * 4; return r
def wf(s, i): r = 128 + s * 64 + 32 + i * 4; return r

def setup_lds_addrs(a, wave="s16"):
    L = f"v{G.LANE}"
    t0, t1, t2 = G.T, G.T + 1, G.T + 2
    a(f"s_and_b32 s17, {wave}, 1")
    a("s_lshl_b32 s17, s17, 14")
    a(f"v_and_b32 v{t0}, 15, {L}")
    a(f"v_lshrrev_b32 v{t1}, 1, v{t0}")
    a(f"v_lshrrev_b32 v{t2}, 4, {L}")
    a(f"v_xor_b32 v{t1}, v{t1}, v{t2}")
    a(f"v_lshlrev_b32 v{t0}, 7, v{t0}")
    a(f"v_add_u32 v{t0}, s17, v{t0}")
    for ks in range(2):
        a(f"v_xor_b32 v{t2}, {4*ks}, v{t1}")
        a(f"v_lshl_add_u32 v{G.XR+ks}, v{t2}, 4, v{t0}")
    a(f"v_lshrrev_b32 v{t0}, 4, {L}")
    a(f"v_lshlrev_b32 v{t0}, 3, v{t0}")
    a(f"v_bfe_u32 v{t1}, {L}, 2, 2")
    a(f"v_add_u32 v{t0}, v{t0}, v{t1}")
    a(f"v_lshlrev_b32 v{t0}, 9, v{t0}")
    a(f"v_and_b32 v{t2}, 3, {L}")
    a(f"v_lshl_add_u32 v{t0}, v{t2}, 3, v{t0}")
    a(f"v_add_u32 v{t0}, 0x10000, v{t0}")
    a(f"v_bfe_u32 v{t1}, {L}, 2, 3")
    a(f"s_lshr_b32 s17, {wave}, 1")
    a(f"s_lshl_b32 s17, s17, 3")
    for i in range(8):
        a(f"s_add_u32 s18, s17, {i}")
        a(f"v_xor_b32 v{t2}, s18, v{t1}")
        a(f"v_lshl_add_u32 v{G.WR+i}, v{t2}, 5, v{t0}")

def setup_gl_addrs(a, xpitch, wpitch, wave="s16"):
    L = f"v{G.LANE}"
    t0, t1, t2 = G.T, G.T + 1, G.T + 2
    a(f"v_lshrrev_b32 v{t0}, 3, {L}")
    a(f"s_lshl_b32 s17, {wave}, 3")
    a(f"v_add_u32 v{t0}, s17, v{t0}")
    a(f"v_bfe_u32 v{t1}, v{t0}, 1, 3")
    a(f"v_and_b32 v{t2}, 7, {L}")
    a(f"v_xor_b32 v{t1}, v{t1}, v{t2}")
    a(f"v_lshlrev_b32 v{t1}, 4, v{t1}")
    a(f"v_mul_u32_u24 v{t0}, {xpitch}, v{t0}")
    a(f"v_add_u32 v{G.XG}, v{t0}, v{t1}")
    a(f"s_and_b32 s17, {wave}, 1")
    a(f"s_lshr_b32 s18, {wave}, 1")
    a("s_lshl_b32 s18, s18, 2")
    a("s_add_u32 s17, s17, s18")
    a("s_lshl_b32 s17, s17, 1")
    a(f"v_lshrrev_b32 v{t0}, 5, {L}")
    a(f"v_add_u32 v{t0}, s17, v{t0}")
    a(f"v_and_b32 v{t1}, 3, v{t0}")
    a(f"v_bfe_u32 v{t2}, v{t0}, 3, 1")
    a(f"v_lshl_add_u32 v{t1}, v{t2}, 2, v{t1}")
    a(f"v_lshlrev_b32 v{t1}, 1, v{t1}")
    a(f"v_and_b32 v{t2}, 31, {L}")
    a(f"v_xor_b32 v{t1}, v{t1}, v{t2}")
    a(f"v_lshlrev_b32 v{t1}, 4, v{t1}")
    a(f"v_mul_u32_u24 v{t0}, {wpitch}, v{t0}")
    a(f"v_add_u32 v{G.WG}, v{t0}, v{t1}")
    a(f"s_lshl_b32 s34, {wave}, 10")
    a("s_lshl_b32 s35, s17, 9")
    a("s_add_u32 s35, s35, 0x10000")

def dma(stage, xpitch, wpitch):
    out = []
    for j in range(8):
        out += [f"s_add_u32 m0, s34, {stage*32768 + j*4096}", f"s_add_u32 s36, s32, {j*32*xpitch}",
                f"buffer_load_dwordx4 v{G.XG}, s[20:23], s36 offen lds"]
        pi = 2 * (j & 1) + 8 * (j >> 1)
        out += [f"s_add_u32 m0, s35, {stage*32768 + pi*1024}", f"s_add_u32 s37, s33, {pi*2*wpitch}",
                f"buffer_load_dwordx4 v{G.WG}, s[24:27], s37 offen lds"]
    out += ["s_add_u32 s32, s32, 128", f"s_add_u32 s33, s33, {64*wpitch}"]
    return out

def reads(stage, ks, s):
    xr = [f"ds_read_b128 a[{xf(s,i)}:{xf(s,i)+3}], v{G.XR+ks} offset:{stage*32768 + i*2048}" for i in range(8)]
    wr = []
    for i in range(8):
        for hf in range(2):
            r = wf(s, i) + 2 * hf
            wr.append(f"ds_read_b64_tr_b16 a[{r}:{r+1}], v{G.WR+i} offset:{stage*32768 + ks*16384 + hf*2048}")
    return xr[:1] + wr + xr[1:]

def mfmas(s, isV, first=False):
    out = []
    for x in range(8):
        for w in range(8):
            X = f"a[{xf(s,x)}:{xf(s,x)+3}]"; W = f"a[{wf(s,w)}:{wf(s,w)+3}]"
            A, B = (X, W) if isV else (W, X)
            i = x * 8 + w
            C = "0" if first else acc(i)
            out.append(f"v_mfma_f32_16x16x32_bf16 {acc(i)}, {A}, {B}, {C}")
    return out

def merge(l1, l2):
    out = []; i = j = 0
    n1, n2 = len(l1), len(l2)
    while i < n1 or j < n2:
        if j >= n2 or (i < n1 and i * n2 <= j * n1):
            out.append(l1[i]); i += 1
        else:
            out.append(l2[j]); j += 1
    return out

def kstep(a, stage, isV, xp, wp, first=False, do_dma=True, last=False, frac=1.0, dma_prev=False):
    d = dma(stage, xp, wp)
    cut = int(round(16 * frac)) * 3
    if cut >= 48: cut = len(d)
    a("s_waitcnt lgkmcnt(0)")
    f0 = reads(stage, 1, 1)
    if dma_prev and cut < len(d):
        dp = dma(stage ^ 1, xp, wp)[cut:]
        spread(a, mfmas(0, isV, first), merge(f0, dp), 0, 48)
    else:
        spread(a, mfmas(0, isV, first), f0, 0, 32)
    if last:
        a("s_waitcnt lgkmcnt(0)")
        spread(a, mfmas(1, isV), [])
    else:
        a("s_waitcnt lgkmcnt(0) vmcnt(0)")
        a("s_barrier")
        f1 = reads(stage ^ 1, 0, 0)
        if do_dma:
            spread(a, mfmas(1, isV), merge(f1, d[:cut]), 0, 60)
        else:
            spread(a, mfmas(1, isV), f1, 0, 32)

def tile_loop(a, nk, isV, xp, wp, frac, timing=False):
    cut = int(round(16 * frac)) * 3
    for g in dma(0, xp, wp): a(g)
    d1 = dma(1, xp, wp)
    if cut < 48: d1 = d1[:cut]
    for g in d1: a(g)
    a(f"s_waitcnt vmcnt({sum('buffer_load' in x for x in d1)})")
    a("s_barrier")
    if timing: stamp_mid(a, 0)
    for r in reads(0, 0, 0): a(r)
    kstep(a, 0, isV, xp, wp, first=True, frac=frac, dma_prev=True)
    rem = nk - 1
    t = 1
    nloop = (rem - 2) // 2
    if nloop > 0:
        loop = a.label("gl")
        a("s_mov_b32 s38, 0")
        a(f"{loop}:")
        kstep(a, 1, isV, xp, wp, frac=frac, dma_prev=True)
        kstep(a, 0, isV, xp, wp, frac=frac, dma_prev=True)
        a("s_add_u32 s38, s38, 1")
        a(f"s_cmp_lt_u32 s38, {nloop}")
        a(f"s_cbranch_scc1 {loop}")
        t += 2 * nloop
    while t < nk:
        kstep(a, t & 1, isV, xp, wp, do_dma=(t + 2 < nk), last=(t == nk - 1), frac=frac, dma_prev=(t + 1 < nk))
        t += 1

def epilogue_frag(a, isV, stflags, sbase="s39", scale=None, xstride=8192, gelu=None):
    from b12 import gelu_ops
    a("s_nop 7")
    a(f"v_lshlrev_b32 v{G.XG}, 4, v{G.LANE}")
    n = 0
    pairs = []
    if not isV:
        for x in range(8):
            for t in range(4):
                pairs.append((x * 8 + 2 * t, x * 8 + 2 * t + 1, x * xstride + t * 1024, x))
    else:
        for u in range(4):
            for w in range(8):
                pairs.append((2 * u * 8 + w, (2 * u + 1) * 8 + w, u * 16384 + w * 1024, 0))
    for (i0, i1, off, x) in pairs:
        t = G.T + 3 + (n % 3) * 12
        src = []
        for q, i in enumerate((i0, i1)):
            if i < 32:
                src += [4 * i + p for p in range(4)]
            else:
                for p in range(4):
                    a(f"v_accvgpr_read_b32 v{t+4+4*q+p}, a{4*(i-32)+p}")
                src += [t + 4 + 4 * q + p for p in range(4)]
        if scale is not None:
            for p in range(8):
                a(f"v_mul_f32 v{src[p]}, {scale}, v{src[p]}")
        if gelu is not None:
            for o in gelu_ops(src, 184, "s41", "v192", post=gelu + x): a(o)
        for p in range(4):
            a(f"v_cvt_pk_bf16_f32 v{t+p}, v{src[2*p]}, v{src[2*p+1]}")
        a(f"s_add_u32 s40, {sbase}, {off}")
        a(f"buffer_store_dwordx4 v[{t}:{t+3}], v{G.XG}, s[28:31], s40 offen {stflags}")
        n += 1

def gen_k1(a, label, frac=1.0, timing=False, stflags="sc1"):
    import b12, math
    from attn import WS_C, CF_PITCH, WS_G
    a.begin_kernel(label)
    done = a.label("k1_done")
    a(f"s_cmp_ge_u32 s2, 256")
    a(f"s_cbranch_scc1 {done}")
    a("s_load_dwordx2 s[4:5], s[0:1], 8")
    a("s_load_dwordx4 s[8:11], s[0:1], 24")
    a("s_load_dwordx2 s[6:7], s[0:1], 112")
    a("s_load_dwordx2 s[68:69], s[0:1], 104")
    if timing: stamp_begin(a)
    a("s_and_b32 s12, s2, 7")
    a("s_lshr_b32 s42, s2, 3")
    a("s_and_b32 s14, s42, 7")
    a("s_lshr_b32 s13, s42, 3")
    a("s_and_b32 s15, s13, 1")
    a("s_lshl_b32 s17, s12, 1")
    a("s_add_u32 s15, s15, s17")
    a(f"v_lshrrev_b32 v{G.T}, 6, v0")
    a(f"v_and_b32 v{G.LANE}, 63, v0")
    a(f"v_readfirstlane_b32 s16, v{G.T}")
    a("s_waitcnt lgkmcnt(0)")
    srd(a, 28, 6, 128 << 20)
    nob = a.label("k1_nob")
    a("s_cmp_lg_u32 s13, 2")
    a(f"s_cbranch_scc1 {nob}")
    a("s_lshl_b32 s43, s12, 3")
    a("s_add_u32 s43, s43, s14")
    b12.gen_b12(a, G.LANE, "s43", timing=timing)
    a("s_cmp_lg_u32 s16, 0")
    a(f"s_cbranch_scc1 {nob}")
    srd(a, 44, 68, 256)
    a("s_lshl_b32 s17, s12, 5")
    a(f"v_mov_b32 v0, 1")
    a(f"v_mov_b32 v1, 0")
    a("s_mov_b64 exec, 1")
    a(f"buffer_atomic_add v0, v1, s[44:47], s17 offen sc1")
    a("s_mov_b64 exec, -1")
    a(f"{nob}:")
    a("s_lshr_b32 s13, s13, 1")
    srd(a, 20, 4, SIZES['ckv'])
    a("s_cmp_eq_u32 s13, 0")
    a("s_cselect_b32 s24, s8, s10")
    a("s_cselect_b32 s25, s9, s11")
    a("s_and_b32 s25, s25, 0xffff")
    a(f"s_mov_b32 s26, {SIZES['wuk']}")
    a("s_mov_b32 s27, 0x20000")
    setup_gl_addrs(a, 2048, 8192)
    a("s_lshl_b32 s32, s14, 19")
    a("s_lshl_b32 s33, s15, 9")
    setup_lds_addrs(a)
    lv = a.label("k1_v")
    fin = a.label("k1_fin")
    a("s_cmp_lg_u32 s13, 0")
    a(f"s_cbranch_scc1 {lv}")
    for isV in (0, 1):
        if isV: a(f"{lv}:")
        tile_loop(a, 16, isV, 2048, 8192, frac, timing)
        if timing: stamp_mid(a, 1)
        a("s_and_b32 s17, s16, 1")
        a("s_lshr_b32 s18, s16, 1")
        a("s_lshl_b32 s39, s15, 20")
        a("s_lshl_b32 s40, s14, 17")
        a("s_add_u32 s39, s39, s40")
        a("s_lshl_b32 s40, s17, 16")
        a("s_add_u32 s39, s39, s40")
        if not isV:
            a("s_lshl_b32 s40, s18, 12")
        else:
            a("s_lshl_b32 s40, s18, 13")
            a(f"s_add_u32 s39, s39, {WS_V}")
        a("s_add_u32 s39, s39, s40")
        epilogue_frag(a, isV, stflags)
        if timing: stamp_mid(a, 2)
        if not isV:
            a("s_load_dwordx2 s[4:5], s[0:1], 0")
            a("s_load_dwordx2 s[8:9], s[0:1], 16")
            a("s_waitcnt lgkmcnt(0)")
            srd(a, 20, 4, SIZES['x'])
            srd(a, 24, 8, SIZES['wq'])
            setup_gl_addrs(a, 896, 8192)
            a(f"s_mul_i32 s32, s14, {256*896}")
            a("s_lshl_b32 s33, s15, 9")
            a("s_barrier")
            tile_loop(a, 7, 0, 896, 8192, frac)
            if timing: stamp_mid(a, 3)
            a(f"s_add_u32 s39, s39, {WS_Q}")
            epilogue_frag(a, 0, stflags, scale=b12.f2u(math.log2(math.e) / 16))
            a(f"s_branch {fin}")
        else:
            a("s_cmp_lt_u32 s42, 24")
            a(f"s_cbranch_scc1 {fin}")
            a("s_cmp_eq_u32 s42, 31")
            a(f"s_cbranch_scc1 {fin}")
            a("s_load_dwordx2 s[8:9], s[0:1], 72")
            srd(a, 44, 68, 256)
            a("s_lshl_b32 s17, s12, 5")
            a(f"v_mov_b32 v1, 0")
            poll = a.label("k1_poll")
            a(f"{poll}:")
            a(f"buffer_load_dword v0, v1, s[44:47], s17 offen sc1")
            a("s_waitcnt vmcnt(0)")
            a("v_readfirstlane_b32 s18, v0")
            a("s_cmp_lt_u32 s18, 8")
            a(f"s_cbranch_scc1 {poll}")
            a("buffer_inv sc1")
            a("s_waitcnt vmcnt(0) lgkmcnt(0)")
            a(f"s_add_u32 s20, s6, {b12.WS_XN}")
            a("s_addc_u32 s21, s7, 0")
            a("s_and_b32 s21, s21, 0xffff")
            a(f"s_mov_b32 s22, {SIZES['x']}")
            a("s_mov_b32 s23, 0x20000")
            srd(a, 24, 8, SIZES['w3'])
            setup_gl_addrs(a, 896, 3584)
            a(f"s_mul_i32 s32, s12, {256*896}")
            a("s_lshl_b32 s33, s14, 9")
            a("s_barrier")
            a(f"v_and_b32 v{G.T}, 15, v{G.LANE}")
            a(f"v_lshlrev_b32 v{G.T}, 2, v{G.T}")
            a("s_lshl_b32 s17, s12, 1")
            a("s_and_b32 s18, s16, 1")
            a("s_add_u32 s17, s17, s18")
            a("s_lshl_b32 s18, s17, 9")
            a(f"s_add_u32 s18, s18, {WS_G}")
            for x in range(8):
                a(f"buffer_load_dword v{200+x}, v{G.T}, s[28:31], s18 offen offset:{x*64}")
            a(f"s_mul_i32 s39, s17, {8*CF_PITCH}")
            a("s_lshl_b32 s18, s14, 13")
            a("s_add_u32 s39, s39, s18")
            a("s_lshr_b32 s18, s16, 1")
            a("s_lshl_b32 s18, s18, 12")
            a("s_add_u32 s39, s39, s18")
            a(f"s_add_u32 s39, s39, {WS_C + 128*1024}")
            tile_loop(a, 7, 0, 896, 3584, frac)
            if timing: stamp_mid(a, 3)
            for x in range(8):
                a(f"v_sub_f32 v{200+x}, 1.0, v{200+x}")
            a(f"s_mov_b32 s41, {b12.f2u(b12.GC0)}")
            a(f"v_mov_b32 v192, {b12.f2u(b12.GC1)}")
            epilogue_frag(a, 0, stflags, xstride=CF_PITCH, gelu=200)
    a(f"{fin}:")
    if timing: stamp_end(a, 0, done)
    a(f"{done}:")
    a("s_endpgm")
    a.end_kernel(label, 512, 256, 102)
```

```python
from asmlib import *
import gemm, attn, fin, sys
timing = len(sys.argv) > 2 and sys.argv[2] == "t"
a = Asm()
gemm.gen_k1(a, "k1_kernel", 1.0, timing=timing)
a.launch("k1_kernel", (256,1,1), (256,1,1), 163840)
attn.gen_attn(a, "k2_kernel", timing=timing)
a.launch("k2_kernel", (256,1,1), (256,1,1), 131072)
fin.gen_fin(a, "k3_kernel", timing=timing)
a.launch("k3_kernel", (224,1,1), (256,1,1), 131072)
open(sys.argv[1], "w").write(a.text())
```

```python
NAME = "gated_mix__compressed_kv_cla__mixer_s_mlp__prompt"

HEADER = """; Kernarg layout (120 bytes, ptrs only, base s[0:1]):
;   32 A_w_uv (1024,16,256) | 40 A_w_o (16,256,448) | 48 B_x | 56 B_w1 (448,448) | 64 B_w2 (448,448)
"""

class Asm:
    def __init__(self):
        self.lines = []
        self.kernels = []
        self.launches = []
        self._lab = 0
    def __call__(self, s=""):
        for l in s.split("\n"):
            l = l.strip()
            if l:
                self.lines.append(l)
    def label(self, base="L"):
        self._lab += 1
        return f"{base}_{self._lab}"
    def begin_kernel(self, label):
        self.lines.append(f".globl {label}")
        self.lines.append(".p2align 8")
        self.lines.append(f".type {label},@function")
        self.lines.append(f"{label}:")
    def end_kernel(self, label, vgpr, accum, sgpr=102):
        self.kernels.append((label, vgpr, accum, sgpr))
    def launch(self, label, grid, block, lds):
        self.launches.append((label, grid, block, lds))
    def text(self):
        out = [HEADER.rstrip("\n")]
        for (label, g, b, lds) in self.launches:
            out.append(f"; @launch kernel={label} grid=({g[0]},{g[1]},{g[2]}) block=({b[0]},{b[1]},{b[2]}) lds={lds}")
        out.append('.amdgcn_target "amdgcn-amd-amdhsa--gfx950"')
        out.append(".text")
        out.append(".macro mf d, a, b, c")
        out.append("v_mfma_f32_16x16x32_bf16 \\d, \\a, \\b, \\c")
        out.append(".endm")
        out += [l.replace("v_mfma_f32_16x16x32_bf16 ", "mf ").replace(", ", ",") if l.startswith("v_mfma_f32_16x16x32") else l for l in self.lines]
        out.append('.section .rodata,"a"')
        for (label, vgpr, accum, sgpr) in self.kernels:
            out.append(".p2align 6")
            out.append(f".amdhsa_kernel {label}")
            out.append(f"  .amdhsa_next_free_vgpr {vgpr}")
            out.append(f"  .amdhsa_next_free_sgpr {sgpr}")
            out.append(f"  .amdhsa_accum_offset {accum}")
            out.append("  .amdhsa_group_segment_fixed_size 0")
            out.append("  .amdhsa_kernarg_size 120")
            out.append("  .amdhsa_user_sgpr_count 2")
            out.append("  .amdhsa_user_sgpr_kernarg_segment_ptr 1")
            out.append("  .amdhsa_system_sgpr_workgroup_id_x 1")
            out.append("  .amdhsa_float_denorm_mode_32 3")
            out.append(".end_amdhsa_kernel")
        return "\n".join(out) + "\n"

KARG = dict(x=0, ckv=8, wq=16, wuk=24, wuv=32, wo=40, bx=48, w1=56, w2=64, w3=72, w4=80, gw=88, out=96, dbg=104, ws=112)
SIZES = dict(x=2048*448*2, ckv=2048*1024*2, wq=448*4096*2, wuk=1024*4096*2, wuv=1024*4096*2, wo=4096*448*2,
             bx=2048*448*2, w1=448*448*2, w2=448*448*2, w3=448*1792*2, w4=1792*448*2, gw=448*2,
             out=2048*448*2, dbg=256, ws=268435456)

def srd(a, d, p, size):
    a(f"s_mov_b32 s{d}, s{p}")
    a(f"s_and_b32 s{d+1}, s{p+1}, 0xffff")
    a(f"s_mov_b32 s{d+2}, {size}")
    a(f"s_mov_b32 s{d+3}, 0x20000")


STAMP_OFF = 200 << 20
def stamp_begin(a):
    a("s_memtime s[70:71]")
    a("s_memrealtime s[72:73]")
    for i in range(8):
        a(f"s_mov_b32 s{74+2*i}, 0")
def stamp_mid(a, i):
    a(f"s_memtime s[{74+2*i}:{75+2*i}]")
def stamp_end(a, kidx, done, wave_s="s16", wsel=0):
    a("s_waitcnt vmcnt(0)")
    a("s_memtime s[90:91]")
    a("s_memrealtime s[92:93]")
    a("s_load_dwordx2 s[94:95], s[0:1], 112")
    a("s_waitcnt lgkmcnt(0)")
    a("s_sub_u32 s90, s90, s70")
    a(f"s_cmp_lg_u32 {wave_s}, {wsel}")
    a(f"s_cbranch_scc1 {done}")
    srd(a, 96, 94, 268435456)
    a("v_mov_b32 v4, s72")
    a("v_mov_b32 v5, s92")
    a("v_mov_b32 v6, s90")
    a("v_mov_b32 v7, 0")
    for i in range(8):
        a(f"s_sub_u32 s{74+2*i}, s{74+2*i}, s70")
        a(f"v_mov_b32 v{8+i}, s{74+2*i}")
    a("s_lshl_b32 s91, s2, 6")
    a(f"s_add_u32 s91, s91, {STAMP_OFF + kidx * 65536}")
    a("v_mov_b32 v3, 0")
    a("buffer_store_dwordx4 v[4:7], v3, s[96:99], s91 offen")
    a("buffer_store_dwordx4 v[8:11], v3, s[96:99], s91 offen offset:16")
    a("buffer_store_dwordx4 v[12:15], v3, s[96:99], s91 offen offset:32")
def gen_stampk(a, label, kidx):
    a.begin_kernel(label)
    d = a.label("st_done")
    stamp_begin(a)
    a("v_lshrrev_b32 v1, 6, v0")
    a("s_nop 0")
    a("v_readfirstlane_b32 s16, v1")
    stamp_end(a, kidx, d)
    a(f"{d}:")
    a("s_endpgm")
    a.end_kernel(label, 16, 16, 102)
```

```python
from m_common import *
from m_b12 import pk, mix

O = 0
def Oreg(b, dt): return (b * 16 + dt) * 4
def S(buf, e, b): return 128 + buf * 16 + (e * 2 + b) * 4
def P(buf, b): return 160 + buf * 8 + b * 4
def NEGM(b): return 176 + b * 4
def E(e, b): return 184 + (e * 2 + b) * 4
PS = 200; LS = 202; VK = 204; VV = 205; VL16 = 206; VD = 207; VNINF = 208; T = 210
def Q(b, k): return 128 + (b * 8 + k) * 4
def FR(n): return 192 + (n % 16) * 4
THR = 0x4e800000
KA = 0x18000; KX = 0x38000; VA = 0x8000; VX = 0x8000
PART_W = 17 * 1024
FL = 220
DBG = set()

def pv_mfmas(pbuf, f0):
    out = []
    for dt in range(16):
        for b in range(2):
            out.append(f"v_mfma_f32_16x16x32_bf16 {vr(Oreg(b,dt))}, {ar(FR(f0+dt))}, {vr(P(pbuf,b))}, {vr(Oreg(b,dt))}")
    return out
def qk_mfmas(sbuf, f0, zero=False):
    out = []
    for e in range(2):
        for k in range(8):
            for b in range(2):
                C = vr(S(sbuf, e, b)) if k else ("0" if zero else vr(NEGM(b)))
                out.append(f"v_mfma_f32_16x16x32_bf16 {vr(S(sbuf,e,b))}, {ar(FR(f0+e*8+k))}, {ar(Q(b,k))}, {C}")
    return out
def kread(par, i, f): return f"ds_read_b128 {ar(FR(f))}, v{VK} offset:{par*16384 + i*1024}"
def vread(par, i, f): return f"ds_read_b128 {ar(FR(f))}, v{VV} offset:{par*16384 + i*1024}"

def mask_ops(sbuf):
    cm = []; sel = []
    idx = {}
    n = 0
    out = []
    for d in (-1, 0, 1):
        for r in range(4):
            sp = 44 + 2 * (n % 12); n += 1
            idx[(d, r)] = sp
            cm.append(f"v_cmp_gt_i32 s[{sp}:{sp+1}], {16*d+r}, v{VD}")
    for e in range(2):
        for b in range(2):
            for r in range(4):
                sp = idx[(e - b, r)]
                sel.append(f"v_cndmask_b32 v{S(sbuf,e,b)+r}, v{S(sbuf,e,b)+r}, v{VNINF}, s[{sp}:{sp+1}]")
    return cm, sel

def softmax_ops(sbuf, pbuf):
    out = []
    groups = [(0, 0), (0, 1), (1, 0), (1, 1)]
    def post(e, b):
        t = E(e, b)
        o = []
        if e == 0:
            o.append(f"v_add_f32 v{PS+b}, v{t}, v{t+1}")
        else:
            o.append(f"v_add_f32 v{PS+b}, v{PS+b}, v{t}")
            o.append(f"v_add_f32 v{PS+b}, v{PS+b}, v{t+1}")
        o.append(f"v_cvt_pk_bf16_f32 v{P(pbuf,b)+2*e}, v{t}, v{t+1}")
        o.append(f"v_add_f32 v{PS+b}, v{PS+b}, v{t+2}")
        o.append(f"v_cvt_pk_bf16_f32 v{P(pbuf,b)+2*e+1}, v{t+2}, v{t+3}")
        o.append(f"v_add_f32 v{PS+b}, v{PS+b}, v{t+3}")
        return o
    prev = []
    for (e, b) in groups:
        ex = [f"v_exp_f32 v{E(e,b)+r}, v{S(sbuf,e,b)+r}" for r in range(4)]
        m = []
        pi = 0
        for i, x in enumerate(ex):
            m.append(x)
            take = (len(prev) * (i + 1)) // 4
            while pi < take:
                m.append(prev[pi]); pi += 1
        out += m
        prev = post(e, b)
    out.append("s_nop 0")
    out += prev
    return out

def rowmax(a, sbuf, dst):
    for b in range(2):
        s0, s1 = S(sbuf, 0, b), S(sbuf, 1, b)
        a(f"v_max3_f32 v{dst+b}, v{s0}, v{s0+1}, v{s0+2}")
        a(f"v_max3_f32 v{dst+b}, v{dst+b}, v{s0+3}, v{s1}")
        a(f"v_max3_f32 v{dst+b}, v{dst+b}, v{s1+1}, v{s1+2}")
        a(f"v_max_f32 v{dst+b}, v{dst+b}, v{s1+3}")
    xlane_reduce(a, "v_max_f32", [dst, dst + 1], dst + 2)

def slow_path(a, sbuf, has_next):
    a("s_nop 15")
    rowmax(a, sbuf, T)
    for b in range(2):
        a(f"v_max_f32 v{T+b}, 0, v{T+b}")
        a(f"v_sub_f32 v{T+2+b}, 0, v{T+b}")
    for b in range(2):
        a(f"v_exp_f32 v{T+2+b}, v{T+2+b}")
    for b in range(2):
        for e in range(2):
            for r in range(4):
                a(f"v_sub_f32 v{S(sbuf,e,b)+r}, v{S(sbuf,e,b)+r}, v{T+b}")
                if has_next:
                    a(f"v_sub_f32 v{S(sbuf^1,e,b)+r}, v{S(sbuf^1,e,b)+r}, v{T+b}")
        for r in range(4):
            a(f"v_sub_f32 v{NEGM(b)+r}, v{NEGM(b)+r}, v{T+b}")
        a(f"v_mul_f32 v{LS+b}, v{LS+b}, v{T+2+b}")
        for i in range(64):
            a(f"v_mul_f32 v{b*64+i}, v{b*64+i}, v{T+2+b}")
    for x in softmax_ops(sbuf, sbuf): a(x)
    a("s_nop 1")

def adv(r):
    return f"s_add_u32 {r}, {r}, 16384\ns_cmp_eq_u32 {r}, s4\ns_cselect_b32 {r}, s34, {r}"
def dma4(srdn, soff):
    return [f"buffer_load_dwordx4 v{VL16}, s[{srdn}:{srdn+3}], {soff} offen offset:{i*1024} sc1 lds" for i in range(4)]
def dma_ops(par):
    o = adv("s33").split("\n") + [f"s_add_u32 m0, s40, {par*16384}"] + adv("s32").split("\n")[:1] + dma4(24, "s33")
    o += adv("s32").split("\n")[1:] + [f"s_add_u32 m0, s41, {par*16384}", "s_nop 0"] + dma4(20, "s32")
    if "nodma" in DBG: o = [x for x in o if not x.startswith("buffer")]
    return o

def step(a, par, kind, masked, slow_sites, tailops=()):
    has_pv = kind != 'F'; has_qk = kind != 'L'
    mf = []; rd = []
    if has_pv:
        mf += pv_mfmas(par ^ 1, 0)
        rd += [("v", vread(par ^ 1, i, i), i) for i in range(16)]
    if has_qk:
        mf += qk_mfmas(par ^ 1, 0)
        rd += [("k", kread(par ^ 1, i, i), i) for i in range(16)]
    rd += [("v", vread(par, i, i), i) for i in range(8)]
    rd = rd[8:]
    sc = Sched(mf)
    n = len(mf)
    for i, (kd, ins, fi) in enumerate(rd):
        sc.fix(2 * i, ins)
        if kd == "k" and fi == 15 and par == 0: sc.fix(2 * i + 1, f"v_xor_b32 v{VK}, {hex(KX)}, v{VK}")
        if kd == "v" and fi == 15 and par == 0: sc.fix(2 * i + 1, f"v_xor_b32 v{VV}, {hex(VX)}, v{VV}")
    for g in range(1, n // 8):
        sc.before(8 * g, "s_waitcnt lgkmcnt(4)")
    a("s_waitcnt vmcnt(12) lgkmcnt(4)")
    a("s_barrier")
    sm = softmax_ops(par, par)
    if masked:
        cm, sel = mask_ops(par)
        sm = cm + [f"v_subrev_u32 v{VD}, 32, v{VD}"] + sel + sm
    if kind != 'F':
        sm = [f"v_add_f32 v{LS}, v{LS}, v{PS}", f"v_add_f32 v{LS+1}, v{LS+1}, v{PS+1}"] + sm
    chk = [f"v_max_f32 v{T}, v{PS}, v{PS+1}", f"v_cmp_nge_f32 vcc, s39, v{T}"]
    sc.stream(sm + chk, 1, n - 1)
    d = dma_ops(par)
    if par == 1: d += [f"s_xor_b32 s40, s40, {hex(VX)}", f"s_xor_b32 s41, s41, {hex(KX)}"]
    sc.stream(d, 0, max(n * 3 // 4, 16))
    for x in tailops: sc.fix(n - 2, x)
    sc.emit(a)
    slow = a.label("slow"); back = a.label("back")
    a(f"s_cbranch_vccnz {slow}")
    a(f"{back}:")
    slow_sites.append((slow, back, par, has_qk))

def entry_flags(a, voff, vneed, t):
    L = f"v{LANE}"
    a(f"v_and_b32 v{voff}, 3, {L}")
    a(f"v_and_b32 v{t}, 12, {L}")
    a(f"v_lshl_add_u32 v{voff}, v{t}, 1, v{voff}")
    a("s_and_b32 s17, s15, 1")
    a("s_lshl_b32 s17, s17, 5")
    a("s_add_u32 s17, s17, s12")
    a(f"v_lshl_add_u32 v{voff}, v{voff}, 3, s17")
    a("s_and_b32 s17, s2, 127")
    a(f"v_mov_b32 v{vneed}, {ST_KV}")
    a(f"v_writelane_b32 v{voff}, s17, 16")
    a(f"v_writelane_b32 v{vneed}, {ST_PUB}, 16")
    wg_to_off(a, voff)
    a("s_mov_b32 s10, 0x1ffff")
    a("s_cmp_eq_u32 s13, 0")
    a("s_cselect_b32 s10, 0xff, s10")

def setup(a, adj):
    L = f"v{LANE}"
    a(f"v_lshlrev_b32 v{VL16}, 4, {L}")
    a("s_lshl_b32 s5, s15, 3")
    a("s_add_u32 s5, s5, s14")
    a("s_lshl_b32 s17, s14, 2")
    a(f"s_sub_u32 s34, {30 + adj}, s17")
    a("s_min_u32 s34, s34, 32")
    a("s_sub_u32 s8, 15, s14")
    a("s_sub_u32 s17, 64, s17")
    a("s_cmp_eq_u32 s13, 0")
    a("s_cselect_b32 s9, 0, s34")
    a("s_cselect_b32 s10, s34, s17")
    a("s_cselect_b32 s11, 0, 2")
    a("s_lshl_b32 s17, s15, 20")
    a("s_add_u32 s20, s6, s17")
    a("s_addc_u32 s21, s7, 0")
    a("s_and_b32 s21, s21, 0xffff")
    a("s_mov_b32 s22, 0x100000")
    a("s_mov_b32 s23, 0x20000")
    a(f"s_add_u32 s24, s20, {WS_V}")
    a("s_addc_u32 s25, s21, 0")
    a("s_mov_b32 s26, 0x100000")
    a("s_mov_b32 s27, 0x20000")
    a("s_lshl_b32 s40, s16, 12")
    a("s_lshl_b32 s32, s9, 14")
    a("s_add_u32 s32, s32, s40")
    a("s_mov_b32 s33, s32")
    a("s_lshl_b32 s4, s10, 14")
    a("s_add_u32 s4, s4, s40")
    a("s_cmp_eq_u32 s13, 0")
    a("s_cselect_b32 s34, s40, 0x70000000")
    a(f"s_add_u32 s41, s40, {KA}")
    a("s_lshl_b32 s38, s8, 2")
    a("s_add_u32 s38, s38, s16")
    a("s_lshl_b32 s38, s38, 14")
    a("s_add_u32 s38, s38, s17")
    a(f"s_add_u32 s38, s38, {WS_Q}")
    g = []
    def grp(lds, srdn, r, first):
        d = dma4(srdn, r)
        g.append([f"s_add_u32 m0, s40, {lds}", "s_nop 0" if first else adv(r), d[0]])
        for x in d[1:]: g.append([x])
    grp(KA, 20, "s32", True)
    grp(KA + 16384, 20, "s32", False)
    grp(VA, 24, "s33", True)
    grp(KA + 32768, 20, "s32", False)
    grp(VA + 16384, 24, "s33", False)
    grp(KA + 49152, 20, "s32", False)
    return g
def q_ops(op):
    g = []
    for c4 in range(4):
        for i in range(4):
            o = [f"buffer_{op}_dwordx4 {ar(128 + (c4*4+i)*4)}, v{VL16}, s[28:31], s38 offen offset:{i*1024} sc1"]
            if i == 3 and c4 < 3: o.append("s_add_u32 s38, s38, 4096")
            g.append(o)
    return g

NFIRST = 6
def gen_attn(a, timing, tail):
    L = f"v{LANE}"
    a(f"v_and_b32 v{T+9}, 15, {L}")
    a(f"v_lshrrev_b32 v{T+2}, 4, {L}")
    a(f"v_lshlrev_b32 v{T+2}, 2, v{T+2}")
    a(f"v_sub_u32 v{T+8}, v{T+9}, v{T+2}")
    a(f"v_mov_b32 v{VNINF}, 0xff800000")
    a(f"s_mov_b32 s39, {THR}")
    a(f"v_add_u32 v{VK}, {hex(KA)}, v{VL16}")
    a(f"v_add_u32 v{VV}, {hex(VA)}, v{VL16}")
    a(f"s_mov_b32 s35, {ST_PUB}")
    import m_e2
    m_e2.poison_ops(a, VL16, 224)
    if timing in (1, 2): stamp_mid(a, 3)
    seg = a.label("seg")
    a(f"{seg}:")
    for i in range(16): a(kread(0, i, i))
    a("s_lshl_b32 s18, s8, 2")
    a("s_add_u32 s18, s18, s16")
    a("s_sub_u32 s17, s18, s9")
    a("s_lshl_b32 s17, s17, 5")
    a(f"v_add_u32 v{VD}, s17, v{T+8}")
    a(f"v_mov_b32 v{LS}, 0")
    a(f"v_mov_b32 v{LS+1}, 0")
    cm, sel = mask_ops(0)
    sc = Sched(qk_mfmas(0, 0, zero=True), cap=12)
    for g in range(4): sc.before(8 * g, f"s_waitcnt lgkmcnt({12 - 4*g if g < 2 else 4})")
    for i in range(8): sc.fix(16 + 2 * i, kread(1, i, i))
    sc.stream([f"v_pk_mov_b32 v[{2*i}:{2*i+1}], 0, 0" for i in range(64)] + cm, 0, 32)
    sc.emit(a)
    a("s_sub_u32 s17, s10, s9")
    a("s_lshr_b32 s17, s17, 1")
    a("s_sub_u32 s17, s17, 1")
    a("s_min_u32 s37, s17, 2")
    a("s_cmp_eq_u32 s11, 0")
    a("s_cselect_b32 s37, 0, s37")
    a("s_sub_u32 s36, s17, s37")
    for x in sel: a(x)
    rowmax(a, 0, T)
    for b in range(2):
        for r in range(4):
            a(f"v_sub_f32 v{NEGM(b)+r}, 0, v{T+b}")
        for e in range(2):
            for r in range(4):
                a(f"v_sub_f32 v{S(0,e,b)+r}, v{S(0,e,b)+r}, v{T+b}")
    sites = []
    step(a, 0, 'F', False, sites)
    lm = a.label("lm"); lx = a.label("lx"); lmend = a.label("lmend"); lxend = a.label("lxend")
    a("s_waitcnt vmcnt(8)")
    a("s_barrier")
    set_flag(a, "s35", T)
    if timing == 2: stamp_mid(a, 4)
    a("s_cmp_eq_u32 s36, 0")
    a(f"s_cbranch_scc1 {lmend}")
    a(f"{lm}:")
    step(a, 1, 'M', False, sites)
    step(a, 0, 'M', False, sites, ["s_sub_u32 s36, s36, 1", "s_cmp_lg_u32 s36, 0"])
    a(f"s_cbranch_scc1 {lm}")
    a(f"{lmend}:")
    if timing == 2: stamp_mid(a, 5)
    a("s_lshl_b32 s17, s37, 1")
    a("s_add_u32 s17, s17, s18")
    a("s_add_u32 s17, s17, 1")
    a("s_sub_u32 s17, s17, s10")
    a("s_lshl_b32 s17, s17, 5")
    a(f"v_add_u32 v{VD}, s17, v{T+8}")
    a("s_cmp_eq_u32 s37, 0")
    a(f"s_cbranch_scc1 {lxend}")
    a("s_lshr_b32 s17, s12, 1")
    a("s_lshl_b32 s17, s17, 2")
    a("s_and_b32 s19, s42, 3")
    a("s_add_u32 s17, s17, s19")
    a("s_lshr_b32 s36, s12, 2")
    a("s_lshl_b32 s36, s36, 3")
    a("s_and_b32 s19, s42, 7")
    a("s_add_u32 s36, s36, s19")
    a(f"v_mov_b32 v{FL+1}, s36")
    a("s_mov_b64 exec, 0xffff")
    a(f"v_mov_b32 v{FL+1}, s17")
    a("s_mov_b64 exec, 0xff")
    a(f"v_mov_b32 v{FL+1}, s8")
    a("s_mov_b64 exec, -1")
    a(f"v_and_b32 v{T}, 1, v{FL+1}")
    a(f"v_and_b32 v{T+1}, 7, {L}")
    a(f"v_lshl_add_u32 v{T}, v{T}, 3, v{T+1}")
    a(f"v_lshrrev_b32 v{FL+1}, 1, v{FL+1}")
    a(f"v_lshl_add_u32 v{FL+1}, v{T}, 3, v{FL+1}")
    a(f"v_add_u32 v{FL+1}, 128, v{FL+1}")
    a("s_and_b32 s17, s2, 127")
    a(f"v_writelane_b32 v{FL+1}, s17, 24")
    wg_to_off(a, FL + 1)
    a(flag_load(FL, FL + 1))
    a("s_mov_b32 s19, 1")
    a(f"{lx}:")
    step(a, 1, 'M', True, sites)
    step(a, 0, 'M', True, sites)
    h2 = a.label("h2done")
    a("s_cmp_eq_u32 s19, 0")
    a(f"s_cbranch_scc1 {h2}")
    a("s_mov_b32 s19, 0")
    a("s_waitcnt vmcnt(16)")
    check(a, FL, FL + 1, 0xffffff, ST_PUB, sctr="s36")
    a("s_lshl_b32 s17, s18, 7")
    a(f"s_add_u32 s17, s17, {WS_G}")
    a(f"v_lshlrev_b32 v{T+4}, 2, v{T+9}")
    a(f"buffer_load_dword v{T+6}, v{T+4}, s[28:31], s17 offen sc1")
    a(f"buffer_load_dword v{T+7}, v{T+4}, s[28:31], s17 offen offset:64 sc1")
    if "ts" in DBG: m_e2.tail_sweep(a, 224)
    code_pf_addr(a, 224)
    a(code_pf(223, 224))
    def part_addr():
        a(f"s_mul_i32 s17, s5, {4*PART_W}")
        a(f"s_mul_i32 s36, s16, {PART_W}")
        a("s_add_u32 s17, s17, s36")
        a(f"s_add_u32 s17, s17, {WS_PART}")
    def part_loads():
        part_addr()
        for c4 in range(4):
            for i in range(4):
                a(f"buffer_load_dwordx4 {ar((c4*4+i)*4)}, v{VL16}, s[28:31], s17 offen offset:{i*1024} sc1")
            a("s_add_u32 s17, s17, 4096")
        a(f"buffer_load_dwordx4 {ar(64)}, v{VL16}, s[28:31], s17 offen sc1")
    a("s_cmp_lg_u32 s11, 2")
    a(f"s_cbranch_scc1 {h2}")
    a(f"v_readlane_b32 s17, v{FL}, 24")
    a(f"s_cmp_lt_u32 s17, {ST_P}")
    a(f"s_cbranch_scc1 {h2}")
    part_loads()
    a("s_mov_b32 s11, 3")
    a(f"{h2}:")
    a("s_sub_u32 s37, s37, 1")
    a("s_cmp_lg_u32 s37, 0")
    a(f"s_cbranch_scc1 {lx}")
    a(f"{lxend}:")
    if timing == 2: stamp_mid(a, 6)
    step(a, 1, 'L', True, sites)
    def final_pv(fill):
        sc = Sched(pv_mfmas(1, 0), cap=12)
        for i in range(8): sc.fix(2 * i, vread(1, 8 + i, 8 + i))
        for g in range(4): sc.before(8 * g, f"s_waitcnt lgkmcnt({4 if g < 3 else 0})" if g != 2 else "s_waitcnt lgkmcnt(4)")
        sc.stream(fill, 0, 32)
        sc.emit(a)
    lsum = [f"v_add_f32 v{LS}, v{LS}, v{PS}", f"v_add_f32 v{LS+1}, v{LS+1}, v{PS+1}"]
    fin = a.label("fin")
    a("s_cmp_lg_u32 s11, 0")
    a(f"s_cbranch_scc1 {fin}")
    final_pv(lsum + [f"v_accvgpr_mov_b32 a{128+i}, a{i}" for i in range(64)])
    a(f"v_xor_b32 v{VV}, {hex(VX)}, v{VV}")
    xlane_reduce(a, "v_add_f32", [LS, LS + 1], T)
    part_addr()
    a(f"v_mov_b32 v{T}, v{NEGM(0)}")
    a(f"v_mov_b32 v{T+1}, v{NEGM(1)}")
    a(f"v_mov_b32 v{T+2}, v{LS}")
    a(f"v_mov_b32 v{T+3}, v{LS+1}")
    a("s_waitcnt vmcnt(0)")
    a("s_barrier")
    for n in range(16):
        for p in range(4): a(f"v_cvt_pk_bf16_f32 v{n*4+p}, v{n*8+2*p}, v{n*8+2*p+1}")
        a(f"buffer_store_dwordx4 {vr(n*4)}, v{VL16}, s[28:31], s17 offen offset:{(n%4)*1024} sc1")
        if n % 4 == 3: a("s_add_u32 s17, s17, 4096")
    a(f"buffer_store_dwordx4 {vr(T)}, v{VL16}, s[28:31], s17 offen sc1")
    a(f"s_mov_b32 s35, {ST_P}")
    a("s_mov_b32 s8, s14")
    a("s_mov_b32 s9, 0")
    a("s_lshl_b32 s10, s14, 2")
    a("s_add_u32 s10, s10, 4")
    a("s_mov_b32 s11, 1")
    a("s_lshl_b32 s4, s10, 14")
    a("s_add_u32 s4, s4, s34")
    a("s_mov_b32 s34, 0x70000000")
    a(f"s_branch {seg}")
    a(f"{fin}:")
    cap = Asm()
    tail.a = cap
    groups = tail.pre()
    tail.a = a
    pre = tail.pack_lines(cap.lines)
    final_pv(lsum + pre[:60])
    for x in pre[60:]: a(x)
    if timing in (1, 2): stamp_mid(a, 4 if timing == 1 else 7)
    xlane_reduce(a, "v_add_f32", [LS, LS + 1], T)
    nomerge = a.label("nomerge"); have = a.label("have"); common = a.label("common")
    SA = E(0, 0); SB = E(0, 0) + 4
    a("s_cmp_lg_u32 s11, 2")
    a(f"s_cbranch_scc1 {have}")
    poll(a, FL + 1, 1 << 24, ST_P, FL)
    part_loads()
    a(f"{have}:")
    a("s_waitcnt vmcnt(0)")
    a("s_barrier")
    a(f"s_mul_i32 s9, s18, {2*CF_PITCH}")
    a("s_lshl_b32 s17, s15, 13")
    a("s_add_u32 s9, s9, s17")
    a(f"s_add_u32 s9, s9, {WS_C}")
    tail.gload()
    gs = []
    for tag, g in groups[:NFIRST]:
        gs += g; tail.log.add(tag, len(g))
    a("s_cmp_eq_u32 s11, 1")
    a(f"s_cbranch_scc1 {nomerge}")
    for r in range(4): a(f"v_accvgpr_read_b32 v{T+r}, a{64+r}")
    for b in range(2):
        a(f"v_min_f32 v{T+4}, v{NEGM(b)}, v{T+b}")
        a(f"v_sub_f32 v{SA+2*b}, v{T+4}, v{NEGM(b)}")
        a(f"v_sub_f32 v{SB+2*b}, v{T+4}, v{T+b}")
    for b in range(2):
        a(f"v_exp_f32 v{SA+2*b}, v{SA+2*b}")
        a(f"v_exp_f32 v{SB+2*b}, v{SB+2*b}")
    a("s_nop 0")
    for b in range(2):
        a(f"v_mul_f32 v{LS+b}, v{LS+b}, v{SA+2*b}")
        a(f"v_fmac_f32 v{LS+b}, v{T+2+b}, v{SB+2*b}")
    for b in range(2): a(f"v_rcp_f32 v{T+b}, v{LS+b}")
    a("s_nop 0")
    for b in range(2): a(f"v_mul_f32 v{T+b}, v{T+b}, v{T+6+b}")
    for b in range(2):
        a(f"v_mul_f32 v{SA+2*b}, v{SA+2*b}, v{T+b}")
        a(f"v_mul_f32 v{SB+2*b}, v{SB+2*b}, v{T+b}")
    body = []
    for n in range(16):
        b = n // 8; r0 = n * 8; t = 128 + (n % 2) * 12
        for p in range(4): body.append(f"v_accvgpr_read_b32 v{t+8+p}, a{n*4+p}")
        for p in range(4): body.append(pk("mul", r0 + 2 * p, r0 + 2 * p, SA + 2 * b, bc=(1,)))
        for p in range(4):
            body.append(f"v_lshlrev_b32 v{t+2*p}, 16, v{t+8+p}")
            body.append(f"v_and_b32 v{t+2*p+1}, 0xffff0000, v{t+8+p}")
        for p in range(4): body.append(pk("fma", r0 + 2 * p, t + 2 * p, SB + 2 * b, r0 + 2 * p, bc=(1,)))
        for p in range(4): body.append(f"v_cvt_pk_bf16_f32 v{n*4+p}, v{r0+2*p}, v{r0+2*p+1}")
    for x in mix(body, gs): a(x)
    a(f"s_branch {common}")
    a(f"{nomerge}:")
    for b in range(2): a(f"v_rcp_f32 v{T+b}, v{LS+b}")
    a("s_nop 0")
    for b in range(2): a(f"v_mul_f32 v{SA+2*b}, v{T+b}, v{T+6+b}")
    body = []
    for n in range(16):
        b = n // 8; r0 = n * 8
        for p in range(4): body.append(pk("mul", r0 + 2 * p, r0 + 2 * p, SA + 2 * b, bc=(1,)))
        for p in range(4): body.append(f"v_cvt_pk_bf16_f32 v{n*4+p}, v{r0+2*p}, v{r0+2*p+1}")
    for x in mix(body, gs): a(x)
    a(f"{common}:")
    for n in range(16):
        a(f"buffer_store_dwordx4 {vr(n*4)}, v{VL16}, s[28:31], s9 offen offset:{(n%4)*1024} sc1")
        if n % 4 == 3 and n < 15:
            a(f"s_add_u32 s9, s9, {4096 if n % 8 == 3 else CF_PITCH - 4096}")
    tail.log.add("c", 16)
    if timing == 1: stamp_mid(a, 5)
    if timing == 3: stamp_mid(a, 0)
    nob3 = a.label("nob3"); join = a.label("join")
    a("s_cmp_ge_u32 s42, 28")
    a(f"s_cbranch_scc1 {nob3}")
    tail.b3(groups[NFIRST:])
    a(f"s_branch {join}")
    a(f"{nob3}:")
    tail.nob3()
    a(f"{join}:")
    return sites

def emit_slow(a, sites):
    for (slow, back, par, has_next) in sites:
        a(f"{slow}:")
        slow_path(a, par, has_next)
        a(f"s_branch {back}")
```

```python
from m_common import *

SLOT = 28672
XN = 4 * SLOT
STG = 65536
ST = STG + 16384
HP = 928

def pk(op, d, *srcs, bc=()):
    s = ", ".join((f"v[{x}:{x+1}]" if isinstance(x, int) else x) for x in srcs)
    hi = ",".join("0" if i in bc else "1" for i in range(len(srcs)))
    m = f" op_sel_hi:[{hi}]" if bc else ""
    return f"v_pk_{op}_f32 v[{d}:{d+1}], {s}{m}"

def gelu_pk(regs, tmp, c0, c1, one, post=None):
    o = []
    for i, r in enumerate(regs): o.append(pk("mul", tmp + 2 * i, r, r))
    for i, r in enumerate(regs): o.append(pk("fma", tmp + 2 * i, tmp + 2 * i, c1, c0, bc=(1,)))
    for i, r in enumerate(regs): o.append(pk("mul", tmp + 2 * i, tmp + 2 * i, r))
    for i in range(2 * len(regs)): o.append(f"v_exp_f32 v{tmp+i}, v{tmp+i}")
    if post is not None:
        for i, r in enumerate(regs): o.append(pk("mul", r, r, post, bc=(1,)))
    else: o.append("s_nop 0")
    for i, r in enumerate(regs): o.append(pk("add", tmp + 2 * i, tmp + 2 * i, one, bc=(1,)))
    for i in range(2 * len(regs)): o.append(f"v_rcp_f32 v{tmp+i}, v{tmp+i}")
    o.append("s_nop 0")
    for i, r in enumerate(regs): o.append(pk("mul", r, r, tmp + 2 * i))
    return o

def mix(main, groups):
    out = []; n = len(main); k = 0
    for i, x in enumerate(main):
        out.append(x)
        while k < len(groups) and (k + 1) * n <= (i + 1) * (len(groups) + 1):
            out += groups[k]; k += 1
    for g in groups[k:]: out += g
    return out

CS = 56; STT = 84; GR = 92; TM = 100
WG = 128; WR = 135; XRES = 100; T = 149

class B12:
    def __init__(self, a, sblk, VL16, timing=0):
        self.a = a; self.sblk = sblk; self.VL16 = VL16; self.timing = timing
        self.WG = [128, 129, 130, 131, 132, 133, 134]
        self.XG = 135; self.HALO = 136; self.G16 = 137
    def dma(self, s):
        o = []
        sr, ss = (56, s) if s < 14 else (60, s - 14)
        for p in range(7):
            g = [f"s_add_u32 m0, s18, {(s%4)*SLOT + p*1024}", f"s_add_u32 s20, s18, {ss*SLOT}",
                 f"buffer_load_dwordx4 v{self.WG[p]}, s[{sr}:{sr+3}], s20 offen lds"]
            o.append(g)
        return o
    def setup(self):
        a = self.a; L = f"v{LANE}"; t = 143; wave = "s16"
        srd(a, 52, 44, SIZES['x'])
        srd(a, 56, 48, SIZES['w1'])
        srd(a, 60, 50, SIZES['w2'])
        srd(a, 64, 46, SIZES['gw'])
        a(f"v_and_b32 v{t}, 15, {L}")
        a(f"v_add_u32 v{t+2}, -2, v{t}")
        a(f"v_add_u32 v{t+3}, 14, v{t}")
        a(f"v_cmp_gt_u32 vcc, 2, v{t}")
        a(f"v_mov_b32 v{t+4}, 0x10000")
        a("s_nop 0")
        a(f"v_cndmask_b32 v{t+2}, v{t+3}, v{t+2}, vcc")
        a(f"v_cmp_gt_u32 vcc, 4, v{t}")
        a(f"s_lshl_b32 s19, {self.sblk}, 4")
        a("s_nop 0")
        a(f"v_cndmask_b32 v{self.HALO}, v{t+4}, v{t+2}, vcc")
        a(f"s_bitcmp1_b32 {wave}, 0")
        a("s_cselect_b64 vcc, -1, 0")
        a(f"v_cndmask_b32 v{t+1}, v{t}, v{self.HALO}, vcc")
        a(f"v_add_u32 v{t+1}, s19, v{t+1}")
        a("s_movk_i32 s17, 896")
        a(f"v_mul_lo_u32 v{t+1}, v{t+1}, s17")
        a(f"v_lshrrev_b32 v{self.G16}, 4, {L}")
        a(f"v_lshlrev_b32 v{self.G16}, 4, v{self.G16}")
        a(f"v_add_u32 v{self.XG}, v{t+1}, v{self.G16}")
        a(f"s_and_b32 s17, {wave}, 1")
        a(f"s_mul_i32 s21, s17, 14336")
        a(f"s_lshl_b32 s17, s17, 2")
        for p in range(7):
            a(f"v_add_u32 v{t}, {p*64}, {L}")
            a(f"v_mul_u32_u24 v{t+1}, 1171, v{t}")
            a(f"v_lshrrev_b32 v{t+1}, 16, v{t+1}")
            a(f"v_and_b32 v{t+3}, 2, v{t+1}")
            a(f"v_or_b32 v{t+3}, s17, v{t+3}")
            a(f"v_xor_b32 v{t}, v{t}, v{t+3}")
            a(f"v_lshlrev_b32 v{self.WG[p]}, 4, v{t}")
        a(f"s_mul_i32 s18, {wave}, 7168")
        a(f"s_lshr_b32 s17, {wave}, 1")
        a("s_mul_i32 s22, s17, 448")
        a("s_mul_i32 s17, s17, 7168")
        a("s_add_u32 s21, s21, s17")
        g = []
        for i in range(7):
            g.append([f"s_add_u32 m0, s21, {XN + i*1024}", f"s_add_u32 s20, s22, {i*64}",
                      f"buffer_load_dwordx4 v{self.XG}, s[52:55], s20 offen lds"])
        return g + self.dma(0), self.dma(1) + self.dma(2) + self.dma(3)
    def body(self, younger, stores, post_hooks, extra, tail_fn):
        a = self.a; L = f"v{LANE}"; wave = "s16"; sblk = self.sblk; timing = self.timing
        WRa = 100
        T = 114
        AS = 112
        ONE = 224
        XRES = 138
        a(f"v_mov_b32 v{T}, 0x3f803f80")
        for i in range(56): a(f"v_accvgpr_write_b32 a{AS+i}, v{T}")
        for i in range(4): a(f"v_accvgpr_write_b32 a{ONE+i}, v{T}")
        a("s_mov_b32 exec_lo, 0xaaaaaaaa")
        a("s_mov_b32 exec_hi, 0xaaaaaaaa")
        for t in range(14):
            a(f"buffer_load_dwordx4 {ar(AS+t*4)}, v{self.G16}, s[64:67], 0 offen offset:{t*64}")
        a("s_mov_b64 exec, -1")
        a(f"v_lshrrev_b32 v{T}, 4, {L}")
        a(f"v_lshlrev_b32 v{T}, 3, v{T}")
        a(f"v_bfe_u32 v{T+1}, {L}, 2, 2")
        a(f"v_add_u32 v{T}, v{T}, v{T+1}")
        a(f"v_mul_u32_u24 v{T}, 896, v{T}")
        a(f"v_and_b32 v{T+1}, 3, {L}")
        a(f"v_lshl_add_u32 v{T}, v{T+1}, 3, v{T}")
        a(f"v_bfe_u32 v{T+1}, {L}, 3, 2")
        a(f"s_mul_i32 s17, {wave}, 7")
        for ct in range(7):
            a(f"s_add_u32 s19, s17, {ct}")
            a(f"v_xor_b32 v{T+2}, s19, v{T+1}")
            a(f"v_lshl_add_u32 v{WRa+ct}, v{T+2}, 5, v{T}")
            a(f"v_add_u32 v{WRa+7+ct}, {2*SLOT}, v{WRa+ct}")
        a(f"v_add_u32 v{T}, {XN}, v{self.VL16}")
        a(f"s_waitcnt vmcnt({min(63, 21 + younger + 14)})")
        a("s_barrier")
        if timing == 1: stamp_mid(a, 3)
        def wreads(s):
            o = []
            sl = s % 4
            for ct in range(7):
                for hf in range(2):
                    r = 168 + (s & 1) * 28 + ct * 4 + hf * 2
                    o.append(f"ds_read_b64_tr_b16 a[{r}:{r+1}], v{WRa+7*(sl>>1)+ct} offset:{(sl&1)*SLOT + hf*3584}")
            return o
        for x in wreads(0): a(x)
        for t in range(14):
            for x in range(2):
                a(f"ds_read_b128 {ar((t*2+x)*4)}, v{T} offset:{x*14336 + t*1024}")
        log = ["w1"] * 7 + ["w2"] * 7 + ["w3"] * 7 + ["y"] * younger + ["gw"] * 14
        def allowed(tags):
            last = max(i for i, x in enumerate(log) if x in tags)
            return len(log) - 1 - last
        statq = []
        for t in range(14):
            for x in range(2):
                X = ar((t * 2 + x) * 4)
                statq.append(f"v_mfma_f32_16x16x32_bf16 {vr(STT+x*4)}, {ar(AS+t*4)}, {X}, {vr(STT+x*4) if t else '0'}")
                statq.append(f"v_mfma_f32_16x16x32_bf16 {vr(GR+x*4)}, {X}, {X}, {vr(GR+x*4) if t else '0'}")
        def gstep(s, nt, extra_groups=()):
            t = s % 14
            mf = []
            def M(d, A, B): mf.append(f"v_mfma_f32_16x16x32_bf16 {vr(d)}, {A}, {B}, {vr(d) if t else '0'}")
            for ct in range(7):
                W = ar(168 + (s & 1) * 28 + ct * 4)
                for x in range(nt): M((x * 7 + ct) * 4, W, ar((t * nt + x) * 4))
                if nt == 2: M(CS + ct * 4, W, ar(ONE))
            if 4 <= s < 14:
                for _ in range(6):
                    if statq: mf.append(statq.pop(0))
            sc = Sched(mf, cap=16)
            if s + 1 < 28:
                a(f"s_waitcnt vmcnt({min(63, allowed({f'w{s+1}'}))}) lgkmcnt(0)")
                a("s_barrier")
                if s in post_hooks: post_hooks[s]()
                fl = []
                if s + 4 < 28:
                    for g in self.dma(s + 4): fl += g
                    log.extend([f"w{s+4}"] * 7)
                for g in extra.get(s, []):
                    fl += g; log.append("ex")
                sc.stream(wreads(s + 1), 0, max(3, len(mf) // 3))
                if fl: sc.stream(fl, 0, len(mf))
            else:
                a("s_waitcnt lgkmcnt(0)")
                a("s_barrier")
            sc.emit(a)
        RX = 138
        a(f"v_and_b32 v{T}, 15, {L}")
        a(f"v_mul_u32_u24 v{RX}, 896, v{T}")
        a(f"v_lshrrev_b32 v{T+1}, 1, v{self.G16}")
        a(f"v_add_u32 v{RX}, v{RX}, v{T+1}")
        a(f"s_mul_i32 s23, {sblk}, {16*896}")
        a(f"s_mul_i32 s17, {wave}, 224")
        a("s_add_u32 s23, s23, s17")
        for s in range(14): gstep(s, 2)
        assert not statq
        if timing == 1: stamp_mid(a, 4)
        a(f"v_and_b32 v{T}, 15, {L}")
        a(f"v_lshrrev_b32 v{T+2}, 2, v{self.G16}")
        a(f"v_sub_u32 v{T+2}, v{T}, v{T+2}")
        for r in range(4):
            a(f"v_cmp_eq_u32 s[{44+2*r}:{45+2*r}], {r}, v{T+2}")
        a(f"s_lshr_b32 s17, {wave}, 1")
        a("s_add_u32 s17, s17, 1")
        a("s_sub_u32 s19, 0, s17")
        a(f"s_bitcmp1_b32 {wave}, 0")
        a("s_cselect_b32 s17, s19, s17")
        a(f"v_add_u32 v{T+9}, s17, v{T}")
        a(f"v_add_u32 v{T+10}, s17, v{self.HALO}")
        a(f"s_mul_i32 s17, {wave}, 224")
        a(f"s_add_u32 s17, s17, {XN}")
        a(f"v_lshrrev_b32 v{T+3}, 1, v{self.G16}")
        a(f"v_add_u32 v{T+3}, s17, v{T+3}")
        a(f"v_mov_b32 v{T+5}, {HP}")
        D = 144; NM = lambda x: 148 + 2 * x; RS = lambda x: 152 + 2 * x
        for x in range(2):
            a(f"v_cndmask_b32 v{D+x}, 0, v{GR+x*4}, s[44:45]")
            for r in range(1, 4):
                a(f"v_cndmask_b32 v{D+x}, v{D+x}, v{GR+x*4+r}, s[{44+2*r}:{45+2*r}]")
        xlane_reduce(a, "v_add_f32", [D, D + 1], D + 2)
        for x in range(2):
            a(f"v_mul_f32 v{NM(x)}, {f2u(-1/448)}, v{STT+x*4}")
            a(f"v_mov_b32 v{RS(x)}, {f2u(1e-5)}")
            a(f"v_fmac_f32 v{RS(x)}, {f2u(1/448)}, v{D+x}")
            a(f"v_fma_f32 v{RS(x)}, -v{NM(x)}, v{NM(x)}, v{RS(x)}")
            a(f"v_max_f32 v{RS(x)}, {f2u(1e-5)}, v{RS(x)}")
        for x in range(2):
            a(f"v_rsq_f32 v{RS(x)}, v{RS(x)}")
        GG = T + 6
        a(f"v_mul_f32 v{GG}, {f2u(-math.log2(math.e))}, v{STT+1}")
        a(f"v_exp_f32 v{GG}, v{GG}")
        a(f"s_mov_b32 s24, {f2u(GC0)}")
        a("s_mov_b32 s25, s24")
        C1 = 144; ON = 146
        a(f"v_mov_b32 v{C1}, {f2u(GC1)}")
        a(f"v_mov_b32 v{ON}, 1.0")
        a(f"v_add_f32 v{GG}, 1.0, v{GG}")
        a(f"v_rcp_f32 v{GG}, v{GG}")
        XR_ = 84
        body = []
        for x in range(2):
            regs = [x * 28 + 2 * i for i in range(14)]
            for i, r in enumerate(regs): body.append(pk("fma", r, CS + 2 * i, NM(x), r, bc=(1,)))
        for x in range(2):
            regs = [x * 28 + 2 * i for i in range(14)]
            for i, r in enumerate(regs): body.append(pk("mul", r, r, RS(x), bc=(1,)))
            body += gelu_pk(regs, CS, "s[24:25]", C1, ON)
            for ct in range(7):
                r = x * 28 + ct * 4
                body.append(f"v_cvt_pk_bf16_f32 v{CS+2*ct}, v{r}, v{r+1}")
                body.append(f"v_cvt_pk_bf16_f32 v{CS+1+2*ct}, v{r+2}, v{r+3}")
            w = [f"v_cmp_gt_u32 vcc, 16, v{T+9+x}", f"v_mad_u32_u24 v{T+4}, v{T+9+x}, v{T+5}, v{T+3}",
                 "s_and_saveexec_b64 s[26:27], vcc"]
            for ct in range(7):
                w.append(f"ds_write_b64 v{T+4}, v[{CS+2*ct}:{CS+1+2*ct}] offset:{ct*32}")
            w.append("s_mov_b64 exec, s[26:27]")
            body.append("\n".join(w))
        res = [[f"buffer_load_dwordx2 v[{XR_+2*ct}:{XR_+2*ct+1}], v{RX}, s[52:55], s23 offen offset:{ct*32}"] for ct in range(7)]
        log.extend(["y"] * len(stores) + ["res"] * 7)
        for x in mix(body, list(stores) + res): a(x)
        a(f"v_mul_u32_u24 v{T+7}, {HP}, v{T}")
        a(f"v_add_u32 v{T+8}, v{T+7}, v{self.G16}")
        a(f"v_add_u32 v{T+8}, {XN}, v{T+8}")
        a("s_waitcnt lgkmcnt(0)")
        a("s_barrier")
        for t in range(14):
            a(f"ds_read_b128 {ar(t*4)}, v{T+8} offset:{t*64}")
        if timing == 1: stamp_mid(a, 5)
        for s in range(14, 28): gstep(s, 1)
        if timing == 1: stamp_mid(a, 6)
        a("s_waitcnt vmcnt(0)")
        tail_groups = tail_fn()
        e = []
        for i in range(14):
            e.append(f"v_lshlrev_b32 v{28+2*i}, 16, v{XR_+i}")
            e.append(f"v_and_b32 v{29+2*i}, 0xffff0000, v{XR_+i}")
        for i in range(14): e.append(pk("add", 2 * i, 2 * i, 28 + 2 * i))
        R = 56
        for i in range(14):
            r = 2 * i
            e.append(pk("mul", R + 2, r, r) if i == 0 else pk("fma", R + 2, r, r, R + 2))
            if i == 1: e.append(pk("add", R, r - 2, r))
            elif i > 1: e.append(pk("add", R, R, r))
        e.append(f"v_add_f32 v{R+4}, v{R}, v{R+1}")
        e.append(f"v_add_f32 v{R+5}, v{R+2}, v{R+3}")
        half = len(tail_groups) * 3 // 5
        for x in mix(e, tail_groups[:half]): a(x)
        xlane_reduce(a, "v_add_f32", [R + 4, R + 5], R)
        a(f"v_lshlrev_b32 v{T+2}, 3, v{T}")
        a(f"v_add_u32 v{T+2}, {ST}, v{T+2}")
        a(f"s_lshl_b32 s17, {wave}, 7")
        a(f"v_add_u32 v{T+4}, s17, v{T+2}")
        a(f"ds_write_b64 v{T+4}, v[{R+4}:{R+5}]")
        a(f"v_sub_f32 v{R+6}, 1.0, v{GG}")
        for x in mix([pk("mul", 28 + 2 * i, 2 * i, R + 6, bc=(1,)) for i in range(14)], tail_groups[half:]): a(x)
        a("s_waitcnt lgkmcnt(0)")
        a("s_barrier")
        for w in range(4):
            a(f"ds_read_b64 v[{R+8+2*w}:{R+9+2*w}], v{T+2} offset:{w*128}")
        a(f"s_mul_i32 s19, {sblk}, {28*1024}")
        a(f"s_mul_i32 s17, {wave}, 7168")
        a("s_add_u32 s19, s19, s17")
        a(f"s_add_u32 s19, s19, {WS_X1}")
        a("s_add_u32 s17, s19, 4096")
        st = [[f"buffer_store_dwordx4 {vr(28+ct*4)}, v{self.VL16}, s[28:31], {'s19' if ct < 4 else 's17'} offen offset:{(ct%4)*1024} sc1"] for ct in range(7)]
        e = ["s_waitcnt lgkmcnt(0)", pk("add", R + 8, R + 8, R + 10), pk("add", R + 12, R + 12, R + 14), pk("add", R + 8, R + 8, R + 12),
             f"v_mul_f32 v{R}, {f2u(-1/448)}, v{R+8}", f"v_mov_b32 v{R+2}, {f2u(1e-5)}", f"v_fmac_f32 v{R+2}, {f2u(1/448)}, v{R+9}",
             f"v_fma_f32 v{R+2}, -v{R}, v{R}, v{R+2}", f"v_max_f32 v{R+2}, {f2u(1e-5)}, v{R+2}", f"v_rsq_f32 v{R+2}, v{R+2}"]
        for i in range(14): e.append(pk("add", 2 * i, 2 * i, R, bc=(1,)))
        for i in range(14): e.append(pk("mul", 2 * i, 2 * i, R + 2, bc=(1,)))
        e.append(f"v_add_u32 v{T+4}, v{T+7}, v{T+3}")
        e.append(f"v_subrev_u32 v{T+4}, {XN - STG}, v{T+4}")
        for ct in range(7):
            e.append(f"v_cvt_pk_bf16_f32 v{XR_+2*ct}, v{4*ct}, v{4*ct+1}")
            e.append(f"v_cvt_pk_bf16_f32 v{XR_+2*ct+1}, v{4*ct+2}, v{4*ct+3}")
            e.append(f"ds_write_b64 v{T+4}, v[{XR_+2*ct}:{XR_+2*ct+1}] offset:{ct*32}")
        for x in mix(e, st): a(x)
        a(f"v_lshlrev_b32 v{T+2}, 2, v{T}")
        a(f"s_lshl_b32 s17, {sblk}, 6")
        a(f"s_add_u32 s17, s17, {WS_G}")
        a(f"buffer_store_dword v{GG}, v{T+2}, s[28:31], s17 offen sc1")
        a(f"v_lshrrev_b32 v{T+4}, 1, v{self.G16}")
        a(f"v_add_u32 v{T+4}, v{T+4}, v{T+7}")
        a(f"s_lshl_b32 s17, {wave}, 6")
        a(f"s_add_u32 s17, s17, {STG}")
        a(f"v_add_u32 v{T+4}, s17, v{T+4}")
        a(f"s_lshl_b32 s19, {sblk}, 14")
        a(f"s_lshl_b32 s17, {wave}, 10")
        a("s_add_u32 s19, s19, s17")
        a(f"s_add_u32 s19, s19, {WS_XN}")
        a("s_waitcnt lgkmcnt(0)")
        a("s_barrier")
        for q in range(4):
            a(f"ds_read_b64 v[{4*q}:{4*q+1}], v{T+4} offset:{q*256}")
            a(f"ds_read_b64 v[{4*q+2}:{4*q+3}], v{T+4} offset:{q*256+32}")
        for q in range(4):
            a(f"s_waitcnt lgkmcnt({6-2*q})")
            a(f"buffer_store_dwordx4 {vr(4*q)}, v{self.VL16}, s[28:31], s19 offen sc1")
            if q < 3: a("s_add_u32 s19, s19, 4096")
        if timing == 1: stamp_mid(a, 7)
```

```python
from asmlib import *
import struct, math

WS_K = 0
WS_V = 16 << 20
WS_Q = 32 << 20
WS_C = 48 << 20
CF_PITCH = 184 * 1024
WS_PART = 80 << 20
WS_G = 100 << 20
WS_FLAG = 101 << 20
WS_X1 = 102 << 20
WS_XN = 106 << 20
WS_SIZE = 128 << 20
ST_KV, ST_PUB, ST_P, ST_C, ST_H, ST_E = 1, 2, 3, 4, 5, 6
LANE = 255

def f2u(x): return "0x%08x" % struct.unpack("<I", struct.pack("<f", x))[0]
def vr(r, n=4): return f"v[{r}:{r+n-1}]"
def ar(r, n=4): return f"a[{r}:{r+n-1}]"

def cost(ins):
    if ins.startswith(("v_exp", "v_rcp", "v_log", "v_rsq")): return 8
    return 4 * (ins.count("\n") + 1)

class Sched:
    def __init__(self, mfmas, cap=8):
        self.m = mfmas
        self.g = [[] for _ in mfmas]
        self.used = [0] * len(mfmas)
        self.pre = [[] for _ in mfmas]
        self.cap = cap
    def fix(self, gap, ins):
        self.g[gap].append(ins); self.used[gap] += cost(ins)
    def before(self, idx, ins):
        self.pre[idx].append(ins)
        if idx > 0: self.used[idx - 1] += cost(ins)
    def stream(self, items, start, end):
        n = len(items); cur = start
        for i, ins in enumerate(items):
            want = max(cur, start + (i * (end - start)) // n)
            gsel = None
            for gi in range(want, end):
                if self.used[gi] + cost(ins) <= self.cap:
                    gsel = gi; break
                if gi - want > 3: break
            if gsel is None:
                cand = list(range(min(want, end - 1), min(want + 3, end)))
                gsel = min(cand, key=lambda x: self.used[x])
            self.fix(gsel, ins); cur = gsel
    def emit(self, a):
        for i, m in enumerate(self.m):
            for x in self.pre[i]: a(x)
            a(m)
            for x in self.g[i]: a(x)

def xlane_reduce(a, op, regs, tmp):
    for swap in ("v_permlane16_swap_b32", "v_permlane32_swap_b32"):
        for i, r in enumerate(regs):
            a(f"v_mov_b32 v{tmp+i}, v{r}")
        a("s_nop 1")
        for i, r in enumerate(regs):
            a(f"{swap} v{tmp+i}, v{r}")
        a("s_nop 1")
        for i, r in enumerate(regs):
            a(f"{op} v{r}, v{r}, v{tmp+i}")

GC0 = -2 * math.sqrt(2 / math.pi) * math.log2(math.e)
GC1 = GC0 * 0.044715
def gelu_ops(regs, tmp, sc0, sc1, post=None):
    o = []
    for i, r in enumerate(regs): o.append(f"v_mul_f32 v{tmp+i}, v{r}, v{r}")
    for i, r in enumerate(regs): o.append(f"v_fma_f32 v{tmp+i}, v{tmp+i}, {sc1}, {sc0}")
    for i, r in enumerate(regs): o.append(f"v_mul_f32 v{tmp+i}, v{tmp+i}, v{r}")
    for i, r in enumerate(regs): o.append(f"v_exp_f32 v{tmp+i}, v{tmp+i}")
    if post is not None:
        for i, r in enumerate(regs): o.append(f"v_mul_f32 v{r}, v{r}, v{post}")
    for i, r in enumerate(regs): o.append(f"v_add_f32 v{tmp+i}, 1.0, v{tmp+i}")
    for i, r in enumerate(regs): o.append(f"v_rcp_f32 v{tmp+i}, v{tmp+i}")
    o.append("s_nop 0")
    for i, r in enumerate(regs): o.append(f"v_mul_f32 v{r}, v{r}, v{tmp+i}")
    return o

def setexec(a, mask):
    if isinstance(mask, str):
        a(f"s_mov_b32 exec_lo, {mask}"); a("s_mov_b32 exec_hi, 0")
    else:
        a(f"s_mov_b64 exec, {hex(mask)}")
def flag_load(dst, voff, srdn=28):
    return f"buffer_load_dword v{dst}, v{voff}, s[{srdn}:{srdn+3}], 0 offen sc1"
def poll(a, voff, mask, need, t0, sctr="s67", srdn=28):
    lp = a.label("poll"); ok = a.label("pollok")
    a(f"s_mov_b32 {sctr}, 0x20000")
    setexec(a, mask)
    a(f"{lp}:")
    a(flag_load(t0, voff, srdn))
    a("s_waitcnt vmcnt(0)")
    a(f"v_cmp_gt_u32 vcc, {need}, v{t0}")
    a(f"s_cbranch_vccz {ok}")
    a("s_sleep 2")
    a(f"s_sub_u32 {sctr}, {sctr}, 1")
    a(f"s_cmp_lg_u32 {sctr}, 0")
    a(f"s_cbranch_scc1 {lp}")
    a(f"{ok}:")
    a("s_mov_b64 exec, -1")
def check(a, reg, voff, mask, need, sctr="s67", srdn=28):
    ok = a.label("chk")
    setexec(a, mask)
    a(f"v_cmp_gt_u32 vcc, {need}, v{reg}")
    a("s_mov_b64 exec, -1")
    a(f"s_cbranch_vccz {ok}")
    poll(a, voff, mask, need, reg, sctr, srdn)
    a(f"{ok}:")
def set_flag(a, val, t0):
    sk = a.label("nofl")
    a("s_cmp_lg_u32 s16, 0")
    a(f"s_cbranch_scc1 {sk}")
    a(f"v_mov_b32 v{t0}, {val}")
    a(f"v_mov_b32 v{t0+1}, 0")
    a("s_mov_b64 exec, 1")
    a(f"buffer_store_dword v{t0}, v{t0+1}, s[28:31], s3 offen sc1")
    a("s_mov_b64 exec, -1")
    a(f"{sk}:")
def wg_to_off(a, r):
    a(f"v_lshlrev_b32 v{r}, 7, v{r}")
    a(f"v_add_u32 v{r}, {WS_FLAG}, v{r}")
```

```python
from m_common import *

XR = 128; WR = 130; VL16 = 142; T = 143; RT = 148; PK = 156
DA = dict(xg=138, wg=139, xs=20, ws=24, sx="s32", sw="s33")
DB = dict(xg=140, wg=141, xs=44, ws=48, sx="s52", sw="s53")

STFL = 'sc1'
def spread(a, mfmas, fillers, start=0, end=None):
    n = len(mfmas)
    if end is None: end = n
    f = list(fillers); g = end - start; k = 0
    for i, m in enumerate(mfmas):
        a(m)
        if start <= i < end:
            tgt = ((i - start + 1) * len(f) + g - 1) // g
            while k < tgt:
                a(f[k]); k += 1
    while k < len(f):
        a(f[k]); k += 1
def merge(l1, l2):
    out = []; i = j = 0; n1, n2 = len(l1), len(l2)
    while i < n1 or j < n2:
        if j >= n2 or (i < n1 and i * n2 <= j * n1):
            out.append(l1[i]); i += 1
        else:
            out.append(l2[j]); j += 1
    return out

def acc(i): return f"v[{4*i}:{4*i+3}]" if i < 32 else f"a[{4*(i-32)}:{4*(i-32)+3}]"
def xf(s, i): return 128 + s * 64 + i * 4
def wf(s, i): return 128 + s * 64 + 32 + i * 4

def setup_lds(a):
    L = f"v{LANE}"; t0, t1, t2 = T, T + 1, T + 2
    a(f"v_lshlrev_b32 v{VL16}, 4, {L}")
    a("s_and_b32 s17, s16, 1")
    a("s_lshl_b32 s17, s17, 14")
    a(f"v_and_b32 v{t0}, 15, {L}")
    a(f"v_lshrrev_b32 v{t1}, 1, v{t0}")
    a(f"v_lshrrev_b32 v{t2}, 4, {L}")
    a(f"v_xor_b32 v{t1}, v{t1}, v{t2}")
    a(f"v_lshlrev_b32 v{t0}, 7, v{t0}")
    a(f"v_add_u32 v{t0}, s17, v{t0}")
    for ks in range(2):
        a(f"v_xor_b32 v{t2}, {4*ks}, v{t1}")
        a(f"v_lshl_add_u32 v{XR+ks}, v{t2}, 4, v{t0}")
    a(f"v_lshrrev_b32 v{t0}, 4, {L}")
    a(f"v_lshlrev_b32 v{t0}, 3, v{t0}")
    a(f"v_bfe_u32 v{t1}, {L}, 2, 2")
    a(f"v_add_u32 v{t0}, v{t0}, v{t1}")
    a(f"v_lshlrev_b32 v{t0}, 9, v{t0}")
    a(f"v_and_b32 v{t2}, 3, {L}")
    a(f"v_lshl_add_u32 v{t0}, v{t2}, 3, v{t0}")
    a(f"v_add_u32 v{t0}, 0x10000, v{t0}")
    a(f"v_bfe_u32 v{t1}, {L}, 2, 3")
    a("s_lshr_b32 s17, s16, 1")
    a("s_lshl_b32 s17, s17, 3")
    for i in range(8):
        a(f"s_add_u32 s18, s17, {i}")
        a(f"v_xor_b32 v{t2}, s18, v{t1}")
        a(f"v_lshl_add_u32 v{WR+i}, v{t2}, 5, v{t0}")

def setup_gl(a, d):
    L = f"v{LANE}"; t0, t1, t2 = T, T + 1, T + 2
    a(f"v_lshrrev_b32 v{t0}, 3, {L}")
    a("s_lshl_b32 s17, s16, 3")
    a(f"v_add_u32 v{t0}, s17, v{t0}")
    a(f"v_bfe_u32 v{t1}, v{t0}, 1, 3")
    a(f"v_and_b32 v{t2}, 7, {L}")
    a(f"v_xor_b32 v{t1}, v{t1}, v{t2}")
    a(f"v_lshlrev_b32 v{t1}, 4, v{t1}")
    a(f"v_mul_u32_u24 v{t0}, {d['xp']}, v{t0}")
    a(f"v_add_u32 v{d['xg']}, v{t0}, v{t1}")
    a("s_and_b32 s17, s16, 1")
    a("s_lshr_b32 s18, s16, 1")
    a("s_lshl_b32 s18, s18, 2")
    a("s_add_u32 s17, s17, s18")
    a("s_lshl_b32 s17, s17, 1")
    a(f"v_lshrrev_b32 v{t0}, 5, {L}")
    a(f"v_add_u32 v{t0}, s17, v{t0}")
    a(f"v_and_b32 v{t1}, 3, v{t0}")
    a(f"v_bfe_u32 v{t2}, v{t0}, 3, 1")
    a(f"v_lshl_add_u32 v{t1}, v{t2}, 2, v{t1}")
    a(f"v_lshlrev_b32 v{t1}, 1, v{t1}")
    a(f"v_and_b32 v{t2}, 31, {L}")
    a(f"v_xor_b32 v{t1}, v{t1}, v{t2}")
    a(f"v_lshlrev_b32 v{t1}, 4, v{t1}")
    a(f"v_mul_u32_u24 v{t0}, {d['wp']}, v{t0}")
    a(f"v_add_u32 v{d['wg']}, v{t0}, v{t1}")
    a("s_lshl_b32 s34, s16, 10")
    a("s_lshl_b32 s35, s17, 9")
    a("s_add_u32 s35, s35, 0x10000")

def dma(stage, d):
    out = []
    xfl = d.get("xfl", "")
    for j in range(8):
        sx, jj = (d['sx2'], j - 4) if ('sx2' in d and j >= 4) else (d['sx'], j)
        out += [f"s_add_u32 m0, s34, {stage*32768 + j*4096}", f"s_add_u32 s36, {sx}, {jj*32*d['xp']}",
                f"buffer_load_dwordx4 v{d['xg']}, s[{d['xs']}:{d['xs']+3}], s36 offen {xfl}lds"]
        pi = 2 * (j & 1) + 8 * (j >> 1)
        out += [f"s_add_u32 m0, s35, {stage*32768 + pi*1024}", f"s_add_u32 s37, {d['sw']}, {pi*2*d['wp']}",
                f"buffer_load_dwordx4 v{d['wg']}, s[{d['ws']}:{d['ws']+3}], s37 offen lds"]
    out += [f"s_add_u32 {d['sx']}, {d['sx']}, 128", f"s_add_u32 {d['sw']}, {d['sw']}, {64*d['wp']}"]
    if 'sx2' in d: out.append(f"s_add_u32 {d['sx2']}, {d['sx2']}, 128")
    return out

def reads(stage, ks, s):
    xr = [f"ds_read_b128 a[{xf(s,i)}:{xf(s,i)+3}], v{XR+ks} offset:{stage*32768 + i*2048}" for i in range(8)]
    wr = []
    for i in range(8):
        for hf in range(2):
            r = wf(s, i) + 2 * hf
            wr.append(f"ds_read_b64_tr_b16 a[{r}:{r+1}], v{WR+i} offset:{stage*32768 + ks*16384 + hf*2048}")
    return xr[:1] + wr + xr[1:]

def mfma1(s, isV, i, first):
    x, w = i // 8, i % 8
    X = f"a[{xf(s,x)}:{xf(s,x)+3}]"; W = f"a[{wf(s,w)}:{wf(s,w)+3}]"
    A, B = (X, W) if isV else (W, X)
    return f"v_mfma_f32_16x16x32_bf16 {acc(i)}, {A}, {B}, {'0' if first else acc(i)}"
def mfmas(s, isV, first=False): return [mfma1(s, isV, i, first) for i in range(64)]

def pairs(isV, xstride=8192):
    p = []
    if not isV:
        for x in range(8):
            for t in range(4): p.append((x * 8 + 2 * t, x * 8 + 2 * t + 1, x * xstride + t * 1024, x))
    else:
        for u in range(4):
            for w in range(8): p.append((2 * u * 8 + w, (2 * u + 1) * 8 + w, u * 16384 + w * 1024, 0))
    return p

def pack_ops(i0, i1, dst, scale=None, rt=RT):
    o = []; src = []
    for q, i in enumerate((i0, i1)):
        if i < 32: src += [4 * i + p for p in range(4)]
        else:
            for p in range(4): o.append(f"v_accvgpr_read_b32 v{rt+4*q+p}, a{4*(i-32)+p}")
            src += [rt + 4 * q + p for p in range(4)]
    if scale:
        for p in range(4):
            o.append(f"v_pk_mul_f32 v[{rt+2*p}:{rt+2*p+1}], v[{src[2*p]}:{src[2*p]+1}], {scale}")
        src = [rt + p for p in range(8)]
    for p in range(4):
        o.append(f"v_cvt_pk_bf16_f32 v{dst+p}, v{src[2*p]}, v{src[2*p+1]}")
    return o
def store_ops(reg, off, sbase):
    return [f"s_add_u32 s40, {sbase}, {off}", f"buffer_store_dwordx4 {vr(reg)}, v{VL16}, s[28:31], s40 offen {STFL}"]
def store_n(reg, n):
    o = []
    if n % 4 == 0: o.append(f"s_add_u32 s40, {'s19' if n & 4 else 's39'}, {(n >> 3) * 16384}")
    o.append(f"buffer_store_dwordx4 {vr(reg)}, v{VL16}, s[28:31], s40 offen offset:{(n & 3) * 1024} {STFL}")
    return o
def pk_slot(n): return PK + 4 * ((n - 8) if n >= 8 else (16 + n))

def kstep(a, stage, isV, d=None, first=False, last=False, seam=None, st=None, nvm=0, post=None, st1=None):
    a("s_waitcnt lgkmcnt(0)")
    f0 = reads(stage, 1, 1)
    if seam:
        pv, scale, sbase = seam
        for n, (i0, i1, off, _) in enumerate(pairs(pv)):
            for x in pack_ops(i0, i1, pk_slot(n), scale): a(x)
            a(mfma1(0, isV, i0, True))
            if n < 24: a(f0[n])
            a(mfma1(0, isV, i1, True))
            if n < 8:
                for x in store_n(pk_slot(n), n): a(x)
        nvm += 8
        for x in (st or []): a(x)
    elif st:
        spread(a, mfmas(0, isV, first), merge(f0, st), 0, 56)
    else:
        spread(a, mfmas(0, isV, first), f0, 0, 32)
    if last:
        a("s_waitcnt lgkmcnt(0)")
        spread(a, mfmas(1, isV), [])
    else:
        a(f"s_waitcnt lgkmcnt(0) vmcnt({nvm})")
        a("s_barrier")
        if post: post()
        f1 = reads(stage ^ 1, 0, 0)
        if d: spread(a, mfmas(1, isV), merge(f1, dma(stage, d)), 0, 60)
        elif st1: spread(a, mfmas(1, isV), merge(f1, st1()), 0, 60)
        else: spread(a, mfmas(1, isV), f1, 0, 32)

def deferred(prevIsV, sbase, part, cnt=8, xstride=8192):
    o = []
    for n in range(8 + cnt * part, 8 + cnt * (part + 1)):
        o += store_n(pk_slot(n), n)
    return o

def steps(a, t0, t1, isV, d, st=None, nvm=0):
    n = t1 - t0
    if n >= 4:
        loop = a.label("gl")
        a(f"s_mov_b32 s38, {n // 2}")
        a(f"{loop}:")
        kstep(a, t0 & 1, isV, d, st=st, nvm=nvm)
        kstep(a, (t0 + 1) & 1, isV, d, st=st, nvm=nvm)
        a("s_sub_u32 s38, s38, 1")
        a("s_cmp_lg_u32 s38, 0")
        a(f"s_cbranch_scc1 {loop}")
        t0 += (n // 2) * 2
    while t0 < t1:
        kstep(a, t0 & 1, isV, d, st=st, nvm=nvm); t0 += 1

def prologue_dma(a, d):
    for g in dma(0, d): a(g)
    for g in dma(1, d): a(g)
def prologue_wait(a, younger=0):
    a(f"s_waitcnt vmcnt({16 + younger})")
    a("s_barrier")
    for r in reads(0, 0, 0): a(r)

def epilogue(a, isV, sbase, xstride=8192, gelu=None):
    a("s_nop 7")
    for n, (i0, i1, off, x) in enumerate(pairs(isV, xstride)):
        dst = PK + 4 * (n % 4)
        if gelu is None:
            for o in pack_ops(i0, i1, dst): a(o)
        else:
            src = []
            for q, i in enumerate((i0, i1)):
                if i < 32: src += [4 * i + p for p in range(4)]
                else:
                    for p in range(4): a(f"v_accvgpr_read_b32 v{RT+4*q+p}, a{4*(i-32)+p}")
                    src += [RT + 4 * q + p for p in range(4)]
            for o in gelu_ops(src, PK + 16, "s41", f"v{PK+24}", post=gelu + x): a(o)
            for p in range(4):
                a(f"v_cvt_pk_bf16_f32 v{dst+p}, v{src[2*p]}, v{src[2*p+1]}")
        for o in store_ops(dst, off, sbase): a(o)
```

```python
from m_common import *
from m_b12 import pk, gelu_pk, mix

ACC = 0
WF = 64
VL16 = 206
WRD = 224
WG = 240
T = 242
NSLOT = 16
XRING = 16

def setup(a, pitches):
    L = f"v{LANE}"
    a(f"v_lshrrev_b32 v{T}, 4, {L}")
    a("s_lshl_b32 s17, s16, 2")
    a(f"v_add_u32 v{T}, s17, v{T}")
    a(f"v_and_b32 v{T+1}, 7, v{T}")
    a(f"v_lshlrev_b32 v{T+1}, 1, v{T+1}")
    a(f"v_and_b32 v{T+2}, 15, {L}")
    a(f"v_xor_b32 v{T+1}, v{T+1}, v{T+2}")
    a(f"v_lshlrev_b32 v{T+1}, 4, v{T+1}")
    for i, p in enumerate(pitches):
        a(f"v_mul_u32_u24 v{T+2}, {p}, v{T}")
        a(f"v_add_u32 v{WG+i}, v{T+2}, v{T+1}")
    a(f"v_lshrrev_b32 v{T}, 2, {L}")
    a(f"v_and_b32 v{T+1}, 7, v{T}")
    a(f"v_lshlrev_b32 v{T}, 8, v{T}")
    a(f"v_and_b32 v{T+2}, 3, {L}")
    a(f"v_lshl_add_u32 v{T}, v{T+2}, 3, v{T}")
    for ct in range(8):
        a(f"v_xor_b32 v{T+2}, {ct}, v{T+1}")
        a(f"v_lshl_add_u32 v{WRD+ct}, v{T+2}, 5, v{T}")
        a(f"v_add_u32 v{WRD+8+ct}, 0x10000, v{WRD+ct}")
    a("s_lshl_b32 s34, s16, 10")

def wdma(slot, wg, srdn, sbase, rowoff, pitch):
    o = []
    for h in range(2):
        o.append([f"s_add_u32 m0, s34, {slot*8192 + h*4096}", f"s_add_u32 s37, {sbase}, {(rowoff + 16*h)*pitch}",
                  f"buffer_load_dwordx4 v{wg}, s[{srdn}:{srdn+3}], s37 offen lds"])
    return o
def xload(xs, sbase, off, xpitch):
    o = []
    for x in range(2):
        o.append([f"s_add_u32 s38, {sbase}, {off + x*xpitch}",
                  f"buffer_load_dwordx4 {ar(xs*8 + x*4)}, v{VL16}, s[28:31], s38 offen sc1"])
    return o
def wreads(slot, s):
    o = []
    for ct in range(8):
        for hf in range(2):
            r = WF + (s & 1) * 32 + ct * 4 + hf * 2
            o.append(f"ds_read_b64_tr_b16 v[{r}:{r+1}], v{WRD + 8*(slot>>3) + ct} offset:{(slot&7)*8192 + hf*4096}")
    return o
def mfmas(s, xs, first):
    o = []
    for ct in range(8):
        for x in range(2):
            d = vr((x * 8 + ct) * 4)
            o.append(f"v_mfma_f32_16x16x32_bf16 {d}, {vr(WF+(s&1)*32+ct*4)}, {ar(xs*8+x*4)}, {'0' if first else d}")
    return o

class VLog:
    def __init__(self): self.l = []
    def add(self, tag, n=1): self.l += [tag] * n
    def allowed(self, tags):
        idx = [i for i, x in enumerate(self.l) if x in tags]
        if not idx: return 63
        return min(63, len(self.l) - 1 - max(idx))
    def drained(self): self.l = []

XB = 128
def xload(xs, sbase, off, xpitch):
    o = []
    for x in range(2):
        o.append([f"s_add_u32 s38, {sbase}, {off + x*xpitch}",
                  f"buffer_load_dwordx4 {ar(XB + xs*8 + x*4)}, v{VL16}, s[28:31], s38 offen sc1"])
    return o
def mfmas(s, xs, first):
    o = []
    for ct in range(8):
        for x in range(2):
            d = vr((x * 8 + ct) * 4)
            o.append(f"v_mfma_f32_16x16x32_bf16 {d}, {vr(WF+(s&1)*32+ct*4)}, {ar(XB+xs*8+x*4)}, {'0' if first else d}")
    return o

WS_EX = 110 << 20

def tail_decode(a):
    a("s_lshr_b32 s4, s12, 1")
    a("s_lshl_b32 s4, s4, 2")
    a("s_and_b32 s17, s42, 3")
    a("s_add_u32 s4, s4, s17")
    a("s_and_b32 s10, s12, 1")
    a("s_mul_i32 s10, s10, 7")
    a("s_lshr_b32 s17, s42, 2")
    a("s_add_u32 s10, s10, s17")
    a("s_lshr_b32 s44, s12, 2")
    a("s_lshl_b32 s44, s44, 3")
    a("s_and_b32 s17, s42, 7")
    a("s_add_u32 s44, s44, s17")
    a("s_lshr_b32 s45, s42, 3")
    a("s_and_b32 s46, s12, 3")

class Tail:
    def __init__(self, a, timing, D=12):
        self.a = a; self.timing = timing; self.D = D; self.log = VLog()
    def pre(self):
        a = self.a
        a("s_load_dwordx4 s[56:59], s[0:1], 72")
        a("s_load_dwordx2 s[60:61], s[0:1], 40")
        a("s_load_dwordx2 s[62:63], s[0:1], 96")
        tail_decode(a)
        setup(a, [3584, 896])
        a(f"v_lshrrev_b32 v{T+1}, 4, v{LANE}")
        a(f"v_and_b32 v{T+1}, 3, v{T+1}")
        a(f"v_and_b32 v{T+2}, 15, v{LANE}")
        a("s_lshl_b32 s17, s16, 2")
        a(f"v_add_u32 v{T+1}, s17, v{T+1}")
        a(f"v_and_b32 v{T+1}, 7, v{T+1}")
        a(f"v_lshlrev_b32 v{T+1}, 1, v{T+1}")
        a(f"v_xor_b32 v{T+1}, v{T+1}, v{T+2}")
        a(f"v_lshrrev_b32 v{T+1}, 3, v{T+1}")
        a("s_cmp_eq_u32 s45, 3")
        a("s_cselect_b32 s19, 1, 0")
        a(f"v_and_b32 v{T+1}, s19, v{T+1}")
        a(f"v_lshlrev_b32 v{T+1}, 30, v{T+1}")
        a(f"v_add_u32 v{WG+1}, v{WG+1}, v{T+1}")
        a("s_waitcnt lgkmcnt(0)")
        srd(a, 20, 56, SIZES['w3'])
        srd(a, 24, 60, SIZES['wo'])
        srd(a, 48, 58, SIZES['w4'])
        srd(a, 52, 62, SIZES['out'])
        a("s_lshl_b32 s32, s10, 8")
        a("s_lshl_b32 s33, s4, 2")
        a("s_add_u32 s33, s33, s16")
        a("s_lshl_b32 s33, s33, 15")
        a(f"s_add_u32 s33, s33, {WS_XN}")
        a("s_lshl_b32 s17, s45, 8")
        a(f"s_mul_i32 s40, s46, {1024*896}")
        a("s_add_u32 s40, s40, s17")
        a(f"s_mul_i32 s41, s46, {448*896}")
        a("s_add_u32 s41, s41, s17")
        a("s_lshl_b32 s43, s44, 2")
        a("s_add_u32 s43, s43, s16")
        a(f"s_mul_i32 s43, s43, {2*CF_PITCH}")
        a(f"s_add_u32 s43, s43, {WS_C}")
        a(f"s_mul_i32 s17, s46, {14*1024}")
        a("s_add_u32 s47, s43, s17")
        a(f"s_add_u32 s47, s47, {128*1024}")
        a("s_lshl_b32 s17, s46, 15")
        a("s_add_u32 s43, s43, s17")
        g = []
        for s in range(14):
            g.append((f"b{s}", wdma(s, WG, 20, "s32", 32 * s, 3584) + xload(s, "s33", s * 1024, 16384)))
        return g
    def pack_lines(self, lines): return list(lines)
    def fw(self, f):
        slot = (14 + f) % NSLOT
        if f < 32: return wdma(slot, WG + 1, 24, "s40", 32 * f, 896)
        return wdma(slot, WG + 1, 48, "s41", 32 * (f - 32), 896)
    def fx(self, f):
        if f < 32: return xload(f % XRING, "s43", f * 1024, CF_PITCH)
        return xload(f % XRING, "s47", (f - 32) * 1024, CF_PITCH)
    def estep(self, mf, nxt_reads, fl, vm=None, last=False):
        a = self.a
        sc = Sched(mf, cap=8)
        for i, r in enumerate(nxt_reads): sc.fix(i, r)
        for q in range(1, 4):
            sc.before(4 * q, f"s_waitcnt lgkmcnt({12 if nxt_reads else 12 - 4*q})")
        if fl: sc.stream(fl, 0, 16)
        sc.emit(a)
    def c_addr(self, FO):
        a = self.a; L = f"v{LANE}"
        a("s_sub_u32 s17, 31, s44")
        a("s_cmp_lt_u32 s44, 8")
        a("s_cselect_b32 s17, s44, s17")
        a("s_lshl_b32 s17, s17, 2")
        a("s_add_u32 s17, s17, s46")
        a("s_lshl_b32 s17, s17, 1")
        a(f"v_and_b32 v{FO}, 1, {L}")
        a(f"v_lshlrev_b32 v{FO}, 6, v{FO}")
        a(f"v_bfe_u32 v{T}, {L}, 1, 1")
        a(f"v_add3_u32 v{FO}, v{FO}, v{T}, s17")
        wg_to_off(a, FO)
    def b3(self, pending):
        a = self.a; log = self.log; D = self.D
        FO = T + 10
        flagged = False
        self.c_addr(FO)
        a(f"s_waitcnt vmcnt({log.allowed({'b0'})})")
        a("s_barrier")
        if self.timing == 3: stamp_mid(a, 1)
        for x in wreads(0, 0): a(x)
        for s in range(14):
            if s % 2 == 0:
                al = log.allowed({f"b{s+1}", f"b{s+2}"})
                a(f"s_waitcnt vmcnt({al}) lgkmcnt(12)")
                a("s_barrier")
                if not flagged and al <= log.allowed({'c'}):
                    set_flag(a, ST_C, T); flagged = True
            else:
                a("s_waitcnt lgkmcnt(12)")
            fl = []
            for _ in range(2):
                if pending:
                    tag, gs = pending.pop(0)
                    for g in gs: fl += g
                    log.add(tag, len(gs))
            self.estep(mfmas(s, s, s == 0), wreads(s + 1, s + 1) if s + 1 < 14 else [], fl)
        assert flagged
        if self.timing == 3: stamp_mid(a, 2)
        a("s_barrier")
        a(flag_load(FO + 1, FO)); log.add("fl")
        a("s_lshl_b32 s17, s4, 2")
        a("s_add_u32 s17, s17, s16")
        a(f"s_mul_i32 s35, s17, {2*CF_PITCH}")
        a("s_lshl_b32 s18, s10, 12")
        a("s_add_u32 s35, s35, s18")
        a(f"s_add_u32 s35, s35, {WS_C + 128*1024}")
        a(f"s_add_u32 s39, s35, {CF_PITCH}")
        a(f"s_mov_b32 s64, {f2u(GC0)}")
        a("s_mov_b32 s65, s64")
        C1 = T; ON = T + 2; OG = T + 4
        a(f"v_mov_b32 v{C1}, {f2u(GC1)}")
        a(f"v_mov_b32 v{ON}, 1.0")
        a(f"v_sub_f32 v{OG}, 1.0, v{T+8}")
        a(f"v_sub_f32 v{OG+2}, 1.0, v{T+9}")
        for part in range(4):
            x = part // 2
            regs = [part * 16 + 2 * i for i in range(8)]
            body = gelu_pk(regs, 64, "s[64:65]", C1, ON, post=OG + 2 * x)
            for t2 in range(2):
                r = part * 16 + t2 * 8; d = 96 + (part * 2 + t2) * 4
                for p in range(4):
                    body.append(f"v_cvt_pk_bf16_f32 v{d+p}, v{r+2*p}, v{r+2*p+1}")
            if part == 2:
                a(f"s_waitcnt vmcnt({log.allowed({'fl'})})")
                check(a, FO + 1, FO, 15, ST_C)
            gs = []
            for f in range((part % 2) * D // 2, (part % 2 + 1) * D // 2):
                gs += self.fw(f) if part < 2 else self.fx(f)
                log.add(f"w{f}" if part < 2 else f"x{f}", 2)
            for o in mix(body, gs): a(o)
        for i in range(8):
            a(f"buffer_store_dwordx4 {vr(96+i*4)}, v{VL16}, s[28:31], {'s35' if i < 4 else 's39'} offen offset:{(i%4)*1024} sc1")
        log.add("h", 8)
        if self.timing == 3: stamp_mid(a, 3)
    def nob3(self):
        a = self.a; FO = T + 10
        a("s_waitcnt vmcnt(0)")
        a("s_barrier")
        set_flag(a, ST_C, T)
        for f in range(self.D):
            for g in self.fw(f):
                for x in g: a(x)
        self.c_addr(FO)
        poll(a, FO, 15, ST_C, FO + 1)
        for f in range(self.D):
            for g in self.fx(f):
                for x in g: a(x)
        a("s_waitcnt vmcnt(0)")
    def gload(self):
        a = self.a
        a(f"v_and_b32 v{T}, 15, v{LANE}")
        a(f"v_lshlrev_b32 v{T}, 2, v{T}")
        a("s_lshl_b32 s17, s4, 2")
        a("s_add_u32 s17, s17, s16")
        a("s_lshl_b32 s17, s17, 7")
        a(f"s_add_u32 s17, s17, {WS_G}")
        a(f"buffer_load_dword v{T+8}, v{T}, s[28:31], s17 offen sc1")
        a(f"buffer_load_dword v{T+9}, v{T}, s[28:31], s17 offen offset:64 sc1")
        self.log.add("g", 2)
    def final(self):
        a = self.a; log = self.log; D = self.D; NS = 46; L = f"v{LANE}"
        FO = T + 10; ND = T + 9
        a("s_lshl_b32 s17, s46, 5")
        for i in range(16):
            a(f"v_xor_b32 v{WRD+i}, s17, v{WRD+i}")
        a(f"s_waitcnt vmcnt({log.allowed({'w0'})})")
        a("s_barrier")
        if self.timing: stamp_mid(a, 6 if self.timing == 1 else 4)
        for x in wreads(14 % NSLOT, 0): a(x)
        a("s_lshr_b32 s17, s44, 2")
        a("s_lshl_b32 s17, s17, 1")
        a("s_and_b32 s18, s44, 3")
        a("s_lshl_b32 s18, s18, 3")
        a("s_add_u32 s17, s17, s18")
        a(f"v_bfe_u32 v{FO}, {L}, 1, 3")
        a(f"v_lshlrev_b32 v{FO}, 5, v{FO}")
        a(f"v_and_b32 v{T+2}, 1, {L}")
        a(f"v_add3_u32 v{FO}, v{FO}, v{T+2}, s17")
        a(f"v_mov_b32 v{ND}, {ST_H}")
        a("s_and_b32 s17, s2, 0xfc")
        a("s_mov_b64 exec, 0xf0000")
        a(f"v_and_b32 v{FO}, 3, {L}")
        a(f"v_add_u32 v{FO}, s17, v{FO}")
        a(f"v_mov_b32 v{ND}, {ST_PUB}")
        a("s_mov_b64 exec, -1")
        wg_to_off(a, FO)
        flagged = False
        pre = ["s_lshl_b32 s19, s44, 2", "s_add_u32 s19, s19, s45", "s_lshl_b32 s32, s19, 17", "s_lshl_b32 s17, s16, 11",
               "s_add_u32 s32, s32, s17", f"s_add_u32 s32, s32, {WS_EX}", "s_lshl_b32 s17, s46, 13", "s_add_u32 s33, s32, s17",
               "s_lshl_b32 s17, s46, 15", "s_add_u32 s32, s32, s17",
               "s_lshl_b32 s35, s44, 2", "s_add_u32 s35, s35, s16", f"s_mul_i32 s36, s35, {2*28*1024}",
               "s_lshl_b32 s18, s45, 3", "s_add_u32 s18, s18, s46", "s_lshl_b32 s39, s18, 10", "s_add_u32 s36, s36, s39",
               f"s_add_u32 s36, s36, {WS_X1}"]
        for x in range(2):
            for h in range(2):
                pre += [f"s_add_u32 s39, s36, {x*28*1024 + h*4096}",
                        f"buffer_load_dwordx4 {vr(128+(x*2+h)*4)}, v{VL16}, s[28:31], s39 offen sc1"]
        for q in range(1, 4):
            pre += [f"s_xor_b32 s39, s46, {q}", f"s_lshl_b32 s{56+q}, s39, 15", f"s_add_u32 s{56+q}, s{56+q}, s33",
                    f"s_lshl_b32 s{60+q}, s39, 13", f"s_add_u32 s{60+q}, s{60+q}, s32"]
        pre += [f"v_and_b32 v{T}, 15, {L}", f"v_mul_u32_u24 v{T}, 896, v{T}", f"v_lshrrev_b32 v{T+1}, 4, {L}",
                f"v_lshl_add_u32 v{T}, v{T+1}, 3, v{T}", f"s_mul_i32 s17, s35, {32*896}", "s_lshl_b32 s18, s18, 5",
                "s_add_u32 s17, s17, s18", "s_add_u32 s18, s17, 128", "s_cmp_eq_u32 s45, 3\ns_cselect_b32 s18, 0x40000000, s18",
                f"v_add_u32 v{T+1}, {16*896}, v{T}"]
        for f in range(NS):
            if f + D == 32:
                a(f"s_waitcnt vmcnt({log.allowed({'fl'})})")
                check(a, FO + 1, FO, 0xf3fff, f"v{ND}")
            if self.timing == 3 and f == 2: stamp_mid(a, 5)
            if self.timing == 3 and f == 24: stamp_mid(a, 6)
            if f % 2 == 0:
                al = log.allowed({f'x{f}', f'x{f+1}', f'w{f+1}', f'w{f+2}'})
                if not flagged and f >= 6: al = min(al, log.allowed({'h'}))
                a(f"s_waitcnt vmcnt({al}) lgkmcnt(12)")
                a("s_barrier")
                if not flagged and al <= log.allowed({'h'}):
                    set_flag(a, ST_H, T); flagged = True
            else:
                a("s_waitcnt lgkmcnt(12)")
            fl = []
            if f + D < NS:
                for g in self.fw(f + D) + self.fx(f + D): fl += g
                log.add(f"w{f+D}", 2); log.add(f"x{f+D}", 2)
                if f + D == 32 - 6:
                    fl.append(flag_load(FO + 1, FO)); log.add("fl")
            else:
                fl = pre[:8]; pre = pre[8:]
                log.add("pre", sum("buffer_" in x for x in fl))
            self.estep(mfmas(f, f % XRING, f == 0), wreads((14 + f + 1) % NSLOT, f + 1) if f + 1 < NS else [], fl)
        assert not pre
        if self.timing: stamp_mid(a, 7)
        a("s_nop 7")
        for q in range(1, 4):
            for x in range(2):
                d = 64 + ((q - 1) * 2 + x) * 4
                for h in range(2):
                    r = (x * 8 + q + 4 * h) * 4
                    a(f"v_cvt_pk_bf16_f32 v{d+2*h}, v{r}, v{r+1}")
                    a(f"v_cvt_pk_bf16_f32 v{d+2*h+1}, v{r+2}, v{r+3}")
                a(f"buffer_store_dwordx4 {vr(d)}, v{VL16}, s[28:31], s{56+q} offen offset:{x*1024} sc1")
        a("s_waitcnt vmcnt(6)")
        for x in range(2):
            for h in range(2):
                r = (x * 8 + 4 * h) * 4
                for p in range(2):
                    a(pk("add", r + 2 * p, r + 2 * p, 128 + (x * 2 + h) * 4 + 2 * p))
        lp = a.label("ex"); ok = a.label("exok")
        a("s_mov_b32 s67, 0x20000")
        a(f"{lp}:")
        for q in range(1, 4):
            for x in range(2):
                a(f"buffer_load_dwordx4 {vr(96+((q-1)*2+x)*4)}, v{VL16}, s[28:31], s{60+q} offen offset:{x*1024} sc1")
        a("s_waitcnt vmcnt(0)")
        a("v_max3_u32 v120, v96, v97, v98")
        for i in range(99, 119, 2):
            a(f"v_max3_u32 v120, v120, v{i}, v{i+1}")
        a("v_max_u32 v120, v120, v119")
        a("v_cmp_eq_u32 vcc, -1, v120")
        a(f"s_cbranch_vccz {ok}")
        a("s_sub_u32 s67, s67, 1")
        a("s_cmp_lg_u32 s67, 0")
        a(f"s_cbranch_scc1 {lp}")
        a(f"{ok}:")
        for q in range(1, 4):
            for x in range(2):
                d = 96 + ((q - 1) * 2 + x) * 4
                for h in range(2):
                    r = (x * 8 + 4 * h) * 4
                    for p in range(2):
                        a(f"v_lshlrev_b32 v{64+4*h+2*p}, 16, v{d+2*h+p}")
                        a(f"v_and_b32 v{65+4*h+2*p}, 0xffff0000, v{d+2*h+p}")
                for h in range(2):
                    r = (x * 8 + 4 * h) * 4
                    for p in range(2):
                        a(pk("add", r + 2 * p, r + 2 * p, 64 + 4 * h + 2 * p))
        for x in range(2):
            for h in range(2):
                r = (x * 8 + 4 * h) * 4; d = 72 + (x * 2 + h) * 2
                a(f"v_cvt_pk_bf16_f32 v{d}, v{r}, v{r+1}")
                a(f"v_cvt_pk_bf16_f32 v{d+1}, v{r+2}, v{r+3}")
                a(f"buffer_store_dwordx2 v[{d}:{d+1}], v{T+x}, s[52:55], {'s17' if h == 0 else 's18'} offen")

def poison_ops(a, vl16, vdat):
    a("s_lshr_b32 s67, s12, 2")
    a("s_lshl_b32 s67, s67, 3")
    a("s_and_b32 s17, s42, 7")
    a("s_add_u32 s67, s67, s17")
    a("s_lshl_b32 s67, s67, 2")
    a("s_lshr_b32 s17, s42, 3")
    a("s_add_u32 s67, s67, s17")
    a("s_lshl_b32 s67, s67, 2")
    a("s_and_b32 s17, s12, 3")
    a("s_add_u32 s67, s67, s17")
    a("s_lshl_b32 s67, s67, 2")
    a("s_add_u32 s67, s67, s16")
    a("s_lshl_b32 s67, s67, 13")
    a(f"s_add_u32 s67, s67, {WS_EX}")
    for i in range(4): a(f"v_mov_b32 v{vdat+i}, -1")
    for i in range(8):
        if i == 4: a("s_add_u32 s67, s67, 4096")
        a(f"buffer_store_dwordx4 {vr(vdat)}, v{vl16}, s[28:31], s67 offen offset:{(i%4)*1024} sc1")

def tail_sweep(a, t):
    L = f"v{LANE}"
    a("s_load_dwordx4 s[56:59], s[0:1], 72")
    a("s_load_dwordx2 s[60:61], s[0:1], 40")
    a("s_lshl_b32 s62, s42, 2")
    a("s_add_u32 s62, s62, s16")
    a(f"v_lshlrev_b32 v{t}, 7, {L}")
    a("s_lshr_b32 s63, s12, 1")
    a("s_lshl_b32 s63, s63, 2")
    a("s_and_b32 s64, s42, 3")
    a("s_add_u32 s63, s63, s64")
    a("s_lshl_b32 s63, s63, 5")
    a("s_and_b32 s64, s42, 28")
    a("s_add_u32 s63, s63, s64")
    a("s_add_u32 s63, s63, s16")
    a("s_lshl_b32 s63, s63, 12")
    a(f"s_add_u32 s63, s63, {WS_XN}")
    a(f"v_lshlrev_b32 v{t+1}, 6, {L}")
    a(f"buffer_load_dword v223, v{t+1}, s[28:31], s63 offen sc1")
    a("s_mul_i32 s63, s62, 49")
    a(f"v_add_u32 v{t+2}, s63, {L}")
    a(f"v_mul_u32_u24 v{t+1}, 18725, v{t+2}")
    a(f"v_lshrrev_b32 v{t+1}, 18, v{t+1}")
    a(f"v_mul_u32_u24 v{t+1}, 14, v{t+1}")
    a(f"v_add_u32 v{t+2}, v{t+2}, v{t+1}")
    a(f"v_lshlrev_b32 v{t+2}, 7, v{t+2}")
    a("s_and_b32 s63, s12, 1")
    a("s_mul_i32 s63, s63, 1792")
    a("s_and_b32 s64, s12, 3")
    a(f"s_mul_i32 s65, s64, {1024*896}")
    a(f"s_mul_i32 s66, s62, {56*128}")
    a("s_add_u32 s65, s65, s66")
    a(f"s_mul_i32 s64, s64, {448*896}")
    a(f"s_mul_i32 s66, s62, {25*128}")
    a("s_add_u32 s64, s64, s66")
    a(f"v_lshlrev_b32 v{t+1}, 6, {L}")
    a("s_waitcnt lgkmcnt(0)")
    srd(a, 44, 56, SIZES['w3'])
    srd(a, 48, 60, SIZES['wo'])
    srd(a, 52, 58, SIZES['w4'])
    a(f"buffer_load_dword v223, v{t+2}, s[44:47], s63 offen")
    a(f"buffer_load_dword v223, v{t}, s[48:51], s65 offen")
    a(f"buffer_load_dword v223, v{t+1}, s[52:55], s64 offen")
```

```python
from m_common import *
import m_e1 as e1, m_b12, m_attn, m_e2, sys
from m_e1 import DA, DB
from m_b12 import mix

def kv_desc(d): return dict(d, xp=2048, wp=8192)

def setup_kv(a, d):
    srd(a, d['xs'], 4, SIZES['ckv'])
    w = d['ws']
    a("s_cmp_eq_u32 s13, 0")
    a(f"s_cselect_b32 s{w}, s8, s10")
    a(f"s_cselect_b32 s{w+1}, s9, s11")
    a(f"s_and_b32 s{w+1}, s{w+1}, 0xffff")
    a(f"s_mov_b32 s{w+2}, {SIZES['wuk']}")
    a(f"s_mov_b32 s{w+3}, 0x20000")
    e1.setup_gl(a, d)
    a(f"s_lshl_b32 {d['sx']}, s14, 19")
    a(f"s_lshl_b32 {d['sw']}, s15, 9")

def kv_out_base(a):
    a("s_and_b32 s17, s16, 1")
    a("s_lshr_b32 s18, s16, 1")
    a("s_lshl_b32 s39, s15, 20")
    a("s_lshl_b32 s40, s14, 17")
    a("s_add_u32 s39, s39, s40")
    a("s_lshl_b32 s40, s17, 16")
    a("s_add_u32 s39, s39, s40")
    a("s_add_u32 s17, s13, 12")
    a("s_lshl_b32 s40, s18, s17")
    a("s_add_u32 s39, s39, s40")
    a("s_lshl_b32 s40, s13, 24")
    a("s_add_u32 s39, s39, s40")
    a("s_lshr_b32 s40, 8192, s13")
    a("s_add_u32 s19, s39, s40")

def init_done(a):
    sk = a.label("noinit")
    a("s_lshl_b32 s17, s16, 8")
    a("s_add_u32 s17, s17, s2")
    a("s_cmp_ge_u32 s17, 8")
    a(f"s_cbranch_scc1 {sk}")
    srd(a, 56, 68, 256)
    a("s_lshl_b32 s17, s2, 2")
    a(f"v_mov_b32 v{e1.T}, 1")
    a(f"v_mov_b32 v{e1.T+1}, 0")
    a("s_mov_b64 exec, 1")
    a(f"buffer_store_dword v{e1.T}, v{e1.T+1}, s[56:59], s17 offen sc1")
    a("s_mov_b64 exec, -1")
    a(f"{sk}:")

PFD = int(__import__('os').environ.get('PFD', 5))
OTHER = [('x', 44, 70), ('wq', 46, 141), ('w1', 48, 16), ('w2', 50, 16), ('w3', 52, 62), ('w4', 54, 62), ('wo', 56, 141)]
def setup_sweep(a, d):
    L = f"v{LANE}"; t = e1.T
    w0 = a.label("sw0"); w1 = a.label("sw1"); dn = a.label("swd")
    a("s_cmp_eq_u32 s16, 0")
    a(f"s_cbranch_scc1 {w0}")
    a("s_cmp_eq_u32 s16, 1")
    a(f"s_cbranch_scc1 {w1}")
    a("s_lshl_b32 s17, s2, 1")
    a("s_add_u32 s17, s17, s16")
    a("s_sub_u32 s17, s17, 2")
    start = 0
    for i, (nm, p, cnt) in enumerate(OTHER):
        if i == 0:
            a(f"s_mov_b32 s60, s{p}"); a(f"s_mov_b32 s61, s{p+1}"); a(f"s_mov_b32 s62, {SIZES[nm]}"); a("s_mov_b32 s18, 0")
        else:
            a(f"s_cmp_ge_u32 s17, {start}")
            a(f"s_cselect_b32 s60, s{p}, s60"); a(f"s_cselect_b32 s61, s{p+1}, s61")
            a(f"s_cselect_b32 s62, {SIZES[nm]}, s62"); a(f"s_cselect_b32 s18, {start}, s18")
        assert cnt * 208 * 128 >= SIZES[nm]
        start += cnt
    a("s_sub_u32 s17, s17, s18")
    a(f"s_mul_i32 s64, s17, {208*128}")
    a("s_movk_i32 s65, 2048")
    a(f"v_lshlrev_b32 v252, 5, {L}")
    a(f"s_branch {dn}")
    a(f"{w0}:")
    a(f"s_mov_b32 s60, s{d['xs']}"); a(f"s_mov_b32 s61, s{d['xs']+1}"); a(f"s_mov_b32 s62, {SIZES['ckv']}")
    a("s_bfe_u32 s17, s42, 0x20002")
    a("s_lshl_b32 s17, s17, 17")
    a("s_lshl_b32 s64, s14, 19")
    a("s_add_u32 s64, s64, s17")
    a("s_add_u32 s64, s64, 384")
    a("s_movk_i32 s65, 128")
    a(f"v_lshlrev_b32 v252, 11, {L}")
    a(f"s_branch {dn}")
    a(f"{w1}:")
    a(f"s_mov_b32 s60, s{d['ws']}"); a(f"s_mov_b32 s61, s{d['ws']+1}"); a(f"s_mov_b32 s62, {SIZES['wuk']}")
    a("s_lshl_b32 s64, s14, 16")
    a("s_lshl_b32 s17, s15, 9")
    a("s_add_u32 s64, s64, s17")
    a(f"s_add_u32 s64, s64, {3*64*8192}")
    a(f"s_mov_b32 s65, {64*8192}")
    a(f"v_lshrrev_b32 v252, 3, {L}")
    a("v_lshlrev_b32 v252, 13, v252")
    a(f"v_and_b32 v{t}, 7, {L}")
    a(f"v_lshl_add_u32 v252, v{t}, 6, v252")
    a(f"{dn}:")
    a("s_and_b32 s61, s61, 0xffff")
    a("s_mov_b32 s63, 0x20000")
SW = ["buffer_load_dword v253, v252, s[60:63], s64 offen", "s_add_u32 s64, s64, s65"]

def gen(label, timing=False, adj=0, tb=0, sweep=True, ta=1):
    a = Asm()
    a.begin_kernel(label)
    done = a.label("done")
    a("s_cmp_lt_u32 s2, 256")
    a("s_cbranch_scc1 go")
    a("s_endpgm")
    a("go:")
    a("s_load_dwordx2 s[4:5], s[0:1], 8")
    a("s_load_dwordx4 s[8:11], s[0:1], 24")
    a("s_load_dwordx2 s[6:7], s[0:1], 112")
    a("s_load_dwordx2 s[68:69], s[0:1], 104")
    a("s_load_dwordx2 s[44:45], s[0:1], 0")
    a("s_load_dwordx2 s[46:47], s[0:1], 16")
    a("s_load_dwordx4 s[48:51], s[0:1], 56")
    a("s_load_dwordx4 s[52:55], s[0:1], 72")
    a("s_load_dwordx2 s[56:57], s[0:1], 40")
    if timing: stamp_begin(a)
    a("s_and_b32 s12, s2, 7")
    a("s_lshr_b32 s42, s2, 3")
    a("v_lshrrev_b32 v1, 6, v0")
    a(f"v_and_b32 v{LANE}, 63, v0")
    a("v_readfirstlane_b32 s16, v1")
    a("s_bfe_u32 s14, s42, 0x10002")
    a("s_lshl_b32 s15, s12, 1")
    a("s_add_u32 s15, s15, s14")
    a("s_lshr_b32 s14, s42, 4")
    a("s_lshl_b32 s14, s14, 2")
    a("s_and_b32 s13, s42, 3")
    a("s_add_u32 s14, s14, s13")
    a("s_bfe_u32 s13, s42, 0x10003")
    a("s_waitcnt lgkmcnt(0)")
    dkv = kv_desc(DA)
    srd(a, 28, 6, WS_SIZE)
    sk = a.label("noclr")
    a("s_cmp_ge_u32 s2, 8")
    a(f"s_cbranch_scc1 {sk}")
    a("v_lshlrev_b32 v0, 4, v0")
    for i in range(4): a(f"v_mov_b32 v{4+i}, 0")
    a("s_lshl_b32 s17, s2, 12")
    a(f"s_add_u32 s17, s17, {WS_FLAG}")
    a("buffer_store_dwordx4 v[4:7], v0, s[28:31], s17 offen sc1")
    a(f"{sk}:")
    setup_kv(a, dkv)
    e1.prologue_dma(a, dkv)
    npre = 0
    if sweep:
        setup_sweep(a, dkv)
        npre = 0
    kv_out_base(a)
    a("s_mov_b32 s66, s13")
    a("s_lshl_b32 s15, s12, 1")
    a("s_add_u32 s15, s15, s13")
    a("s_and_b32 s14, s42, 7")
    a("s_lshr_b32 s13, s42, 4")
    a("s_lshl_b32 s3, s2, 7")
    a(f"s_add_u32 s3, s3, {WS_FLAG}")
    a("s_lshl_b32 s43, s12, 4")
    a("s_and_b32 s17, s42, 15")
    a("s_add_u32 s43, s43, s17")
    e1.setup_lds(a)
    lv = a.label("vpath"); att = a.label("att")
    sw = SW; nsw = 1
    def kv_head(isV):
        a(f"s_waitcnt vmcnt(16)")
        a("s_barrier")
        if timing: stamp_mid(a, 0)
        for r in e1.reads(0, 0, 0): a(r)
        e1.kstep(a, 0, isV, dkv, first=True, st=(sw * (npre + 1) if sw else None), nvm=nsw + npre, post=lambda: init_done(a))
        if tb == 9: stamp_mid(a, 3)
        e1.steps(a, 1, 13, isV, dkv, st=sw, nvm=nsw)
        if tb == 9: stamp_mid(a, 5)
        srd(a, 56, 68, 256)
        a(f"v_lshlrev_b32 v252, 2, v{LANE}")
        e1.kstep(a, 1, isV, dkv, st=[flag_load(254, 252, 56)],
                 post=lambda: check(a, 254, 252, 0xff, 1, srdn=56))
        m_attn.entry_flags(a, 252, 253, e1.T)
        if tb == 9: stamp_mid(a, 7)
    dq = dict(DB, xp=896, wp=8192, sx2="s56")
    B = m_b12.B12(a, "s43", e1.VL16, tb)
    qrest = a.label("qrest"); b12l = a.label("b12")
    a("s_cmp_lg_u32 s66, 0")
    a(f"s_cbranch_scc1 {lv}")
    for isV in (0, 1):
        if isV: a(f"{lv}:")
        kv_head(isV)
        la = a.label("atype")
        a("s_cmp_ge_u32 s42, 16")
        a(f"s_cbranch_scc1 {la}")
        a("s_mov_b64 s[58:59], s[46:47]")
        srd(a, 44, 44, SIZES['x'])
        srd(a, 48, 58, SIZES['wq'])
        e1.setup_gl(a, dq)
        a(f"s_mul_i32 s52, s14, {128*896}")
        a(f"s_sub_u32 s56, {15*128*896}, s52")
        a("s_lshl_b32 s53, s15, 9")
        a(f"s_mov_b32 s54, {f2u(math.log2(math.e) / 16)}")
        a("s_mov_b32 s55, s54")
        e1.kstep(a, 0, isV, dq)
        e1.kstep(a, 1, isV, dq)
        if timing: stamp_mid(a, 1)
        e1.kstep(a, 0, 0, dq, seam=(isV, None, None))
        a(f"s_branch {qrest}")
        a(f"{la}:")
        a("s_load_dwordx2 s[46:47], s[0:1], 88")
        a("s_and_b32 s17, s42, 15")
        a("s_lshl_b32 s17, s17, 2")
        a("s_add_u32 s17, s17, s16")
        a(f"s_mul_i32 s64, s17, {49*128}")
        a(f"v_lshlrev_b32 v{e1.T}, 7, v{LANE}")
        srd(a, 56, 48, SIZES['w1'])
        srd(a, 60, 50, SIZES['w2'])
        e1.kstep(a, 0, isV, st=[f"buffer_load_dword v{e1.T+1}, v{e1.T}, s[56:59], s64 offen"], nvm=1,
                 st1=lambda: [f"buffer_load_dword v{e1.T+1}, v{e1.T}, s[60:63], s64 offen"])
        e1.kstep(a, 1, isV, last=True)
        a("s_waitcnt vmcnt(0)")
        if timing: stamp_mid(a, 1)
        a("s_barrier")
        a("s_mov_b32 s38, s19")
        g0, g1 = B.setup()
        a("s_mov_b32 s19, s38")
        prs = e1.pairs(isV)
        body = []
        for n in range(24): body += e1.pack_ops(prs[n][0], prs[n][1], e1.PK + 4 * n)
        for x in mix(body, g0 + g1): a(x)
        for n in range(24, 32):
            for x in e1.pack_ops(prs[n][0], prs[n][1], 4 * (n - 24)) + e1.store_n(4 * (n - 24), n): a(x)
        a(f"s_branch {b12l}")
    a(f"{qrest}:")
    if tb == 1: stamp_mid(a, 3)
    for p in range(3):
        e1.kstep(a, (p + 1) & 1, 0, dq, st=e1.deferred(0, None, p), nvm=8)
        if tb == 1: stamp_mid(a, 4 + p)
    e1.kstep(a, 0, 0, dq, post=lambda: set_flag(a, ST_KV, e1.T))
    if tb == 1: stamp_mid(a, 7)
    rg = []
    def post21():
        check(a, 254, 252, "s10", "v253")
        rg.extend(m_attn.setup(a, adj))
    flat = lambda gs: [x for g in gs for x in g]
    e1.kstep(a, 1, 0, st=[flag_load(254, 252)], post=post21, st1=lambda: flat(rg[:12]))
    e1.kstep(a, 0, 0, last=True, st=flat(rg[12:]))
    if timing: stamp_mid(a, 2)
    a("s_barrier")
    a("s_and_b32 s17, s16, 1")
    a("s_lshl_b32 s19, s17, 16")
    a("s_lshr_b32 s18, s16, 1")
    a("s_lshl_b32 s18, s18, 12")
    a("s_add_u32 s19, s19, s18")
    a(f"v_add_u32 v{e1.T}, s19, v{e1.VL16}")
    a("s_lshl_b32 s17, s17, 14")
    a(f"v_add_u32 v{e1.T+1}, s17, v{e1.VL16}")
    a(f"v_add_u32 v{e1.T+2}, 0x10000, v{e1.T+1}")
    prs = e1.pairs(0)
    for n in range(16):
        dst = e1.PK + 4 * (n % 4)
        for o in e1.pack_ops(prs[n][0], prs[n][1], dst, "s[54:55]"): a(o)
        a(f"ds_write_b128 v{e1.T}, {vr(dst)} offset:{prs[n][2]}")
    for n in range(16, 32):
        for o in e1.pack_ops(prs[n][0], prs[n][1], 4 * (n - 16), "s[54:55]"): a(o)
    for r in range(2):
        sk = a.label("nord")
        a("s_waitcnt lgkmcnt(0)")
        a("s_barrier")
        a("s_cmp_lt_u32 s16, 2" if r else "s_cmp_ge_u32 s16, 2")
        a(f"s_cbranch_scc1 {sk}")
        for i in range(16): a(f"ds_read_b128 {ar(128+i*4)}, v{e1.T+2} offset:{i*1024}")
        for i in range(16): a(f"ds_read_b128 {ar(i*4)}, v{e1.T+1} offset:{i*1024}")
        a(f"{sk}:")
        if r == 0:
            a("s_waitcnt lgkmcnt(0)")
            a("s_barrier")
            for n in range(16): a(f"ds_write_b128 v{e1.T}, {vr(4*n)} offset:{prs[n][2]}")
            a("s_waitcnt vmcnt(0)")
    a("s_waitcnt lgkmcnt(0)")
    for x in flat(m_attn.q_ops("store")): a(x)
    a(f"s_branch {att}")
    a(f"{b12l}:")
    stores = [[x.replace("s19", "s38") for x in e1.store_n(e1.PK + 4 * n, n)] for n in range(24)]
    def tail_fn():
        check(a, 254, 252, "s10", "v253", sctr="s36")
        g = m_attn.setup(a, adj)
        q = m_attn.q_ops("load")
        return q + g
    B.body(8, stores, {17: lambda: set_flag(a, ST_KV, 139)}, {25: [[flag_load(254, 252)]]}, tail_fn)
    if timing: stamp_mid(a, 2)
    a("s_waitcnt vmcnt(12)")
    a("s_barrier")
    a(f"{att}:")
    tail = m_e2.Tail(a, ta if (timing and not tb and ta != 2) else 0)
    sites = m_attn.gen_attn(a, ta if (timing and not tb) else 0, tail)
    tail.final()
    if timing: stamp_end(a, 0, done)
    a(f"{done}:")
    a("s_endpgm")
    m_attn.emit_slow(a, sites)
    a.end_kernel(label, 512, 256, 102)
    a.launch(label, (256,1,1), (256,1,1), 163840)
    return a

if __name__ == "__main__":
    opts = dict(x.split("=") for x in sys.argv[2:] if "=" in x)
    m_attn.DBG.update(opts.get("dbg", "").split(","))
    e1.STFL = opts.get("stfl", "sc1").replace("none", "")
    a = gen(NAME + "_kernel", timing=("t" in sys.argv[2:]), adj=int(opts.get("adj", 0)),
            tb=int(opts.get("tb", 0)), sweep=int(opts.get("sweep", 1)), ta=int(opts.get("ta", 1)))
    txt = a.text()
    if "single" in sys.argv[2:]:
        txt = txt.replace(f"; @launch kernel={NAME}_kernel ", "; @launch ")
    open(sys.argv[1], "w").write(txt)
```

```python
from asmlib import *
import struct, math

WS_K = 0
WS_V = 16 << 20
WS_Q = 32 << 20
WS_C = 48 << 20
CF_PITCH = 184 * 1024
WS_PART = 80 << 20
WS_G = 100 << 20
WS_FLAG = 101 << 20
WS_X1 = 102 << 20
WS_XN = 106 << 20
WS_SIZE = 128 << 20
ST_KV, ST_PUB, ST_P, ST_C, ST_H, ST_E = 1, 2, 3, 4, 5, 6
LANE = 255

def f2u(x): return "0x%08x" % struct.unpack("<I", struct.pack("<f", x))[0]
def vr(r, n=4): return f"v[{r}:{r+n-1}]"
def ar(r, n=4): return f"a[{r}:{r+n-1}]"

def cost(ins):
    if ins.startswith(("v_exp", "v_rcp", "v_log", "v_rsq")): return 8
    return 4 * (ins.count("\n") + 1)

class Sched:
    def __init__(self, mfmas, cap=8):
        self.m = mfmas
        self.g = [[] for _ in mfmas]
        self.used = [0] * len(mfmas)
        self.pre = [[] for _ in mfmas]
        self.cap = cap
    def fix(self, gap, ins):
        self.g[gap].append(ins); self.used[gap] += cost(ins)
    def before(self, idx, ins):
        self.pre[idx].append(ins)
        if idx > 0: self.used[idx - 1] += cost(ins)
    def stream(self, items, start, end):
        n = len(items); cur = start
        for i, ins in enumerate(items):
            want = max(cur, start + (i * (end - start)) // n)
            gsel = None
            for gi in range(want, end):
                if self.used[gi] + cost(ins) <= self.cap:
                    gsel = gi; break
                if gi - want > 3: break
            if gsel is None:
                cand = list(range(min(want, end - 1), min(want + 3, end)))
                gsel = min(cand, key=lambda x: self.used[x])
            self.fix(gsel, ins); cur = gsel
    def emit(self, a):
        for i, m in enumerate(self.m):
            for x in self.pre[i]: a(x)
            a(m)
            for x in self.g[i]: a(x)

def xlane_reduce(a, op, regs, tmp):
    for swap in ("v_permlane16_swap_b32", "v_permlane32_swap_b32"):
        for i, r in enumerate(regs):
            a(f"v_mov_b32 v{tmp+i}, v{r}")
        a("s_nop 1")
        for i, r in enumerate(regs):
            a(f"{swap} v{tmp+i}, v{r}")
        a("s_nop 1")
        for i, r in enumerate(regs):
            a(f"{op} v{r}, v{r}, v{tmp+i}")

GC0 = -2 * math.sqrt(2 / math.pi) * math.log2(math.e)
GC1 = GC0 * 0.044715
def gelu_ops(regs, tmp, sc0, sc1, post=None):
    o = []
    for i, r in enumerate(regs): o.append(f"v_mul_f32 v{tmp+i}, v{r}, v{r}")
    for i, r in enumerate(regs): o.append(f"v_fma_f32 v{tmp+i}, v{tmp+i}, {sc1}, {sc0}")
    for i, r in enumerate(regs): o.append(f"v_mul_f32 v{tmp+i}, v{tmp+i}, v{r}")
    for i, r in enumerate(regs): o.append(f"v_exp_f32 v{tmp+i}, v{tmp+i}")
    if post is not None:
        for i, r in enumerate(regs): o.append(f"v_mul_f32 v{r}, v{r}, v{post}")
    for i, r in enumerate(regs): o.append(f"v_add_f32 v{tmp+i}, 1.0, v{tmp+i}")
    for i, r in enumerate(regs): o.append(f"v_rcp_f32 v{tmp+i}, v{tmp+i}")
    o.append("s_nop 0")
    for i, r in enumerate(regs): o.append(f"v_mul_f32 v{r}, v{r}, v{tmp+i}")
    return o

def setexec(a, mask):
    if isinstance(mask, str):
        a(f"s_mov_b32 exec_lo, {mask}"); a("s_mov_b32 exec_hi, 0")
    else:
        a(f"s_mov_b64 exec, {hex(mask)}")
def flag_load(dst, voff, srdn=28):
    return f"buffer_load_dword v{dst}, v{voff}, s[{srdn}:{srdn+3}], 0 offen sc1"
def poll(a, voff, mask, need, t0, sctr="s67", srdn=28):
    lp = a.label("poll"); ok = a.label("pollok")
    a(f"s_mov_b32 {sctr}, 0x20000")
    setexec(a, mask)
    a(f"{lp}:")
    a(flag_load(t0, voff, srdn))
    a("s_waitcnt vmcnt(0)")
    a(f"v_cmp_gt_u32 vcc, {need}, v{t0}")
    a(f"s_cbranch_vccz {ok}")
    a("s_sleep 2")
    a(f"s_sub_u32 {sctr}, {sctr}, 1")
    a(f"s_cmp_lg_u32 {sctr}, 0")
    a(f"s_cbranch_scc1 {lp}")
    a(f"{ok}:")
    a("s_mov_b64 exec, -1")
def check(a, reg, voff, mask, need, sctr="s67", srdn=28):
    ok = a.label("chk")
    setexec(a, mask)
    a(f"v_cmp_gt_u32 vcc, {need}, v{reg}")
    a("s_mov_b64 exec, -1")
    a(f"s_cbranch_vccz {ok}")
    poll(a, voff, mask, need, reg, sctr, srdn)
    a(f"{ok}:")
def set_flag(a, val, t0):
    sk = a.label("nofl")
    a("s_cmp_lg_u32 s16, 0")
    a(f"s_cbranch_scc1 {sk}")
    a(f"v_mov_b32 v{t0}, {val}")
    a(f"v_mov_b32 v{t0+1}, 0")
    a("s_mov_b64 exec, 1")
    a(f"buffer_store_dword v{t0}, v{t0+1}, s[28:31], s3 offen sc1")
    a("s_mov_b64 exec, -1")
    a(f"{sk}:")
def wg_to_off(a, r):
    a(f"v_lshlrev_b32 v{r}, 7, v{r}")
    a(f"v_add_u32 v{r}, {WS_FLAG}, v{r}")

def code_pf_addr(a, r):
    a("s_lshl_b32 s17, s42, 2")
    a("s_add_u32 s17, s17, s16")
    a("s_lshl_b32 s17, s17, 11")
    a(f"v_lshl_add_u32 v{r}, v{LANE}, 5, s17")
    a(f"v_min_u32 v{r}, code_end-go-4, v{r}")
def code_pf(dst, r): return f"global_load_dword v{dst}, v{r}, s[100:101]"
```

```python
from m_common import *
import m_e1 as e1, m_b12, m_attn, m_e2, sys
from m_e1 import DA, DB
from m_b12 import mix

CPF = True
def kv_desc(d): return dict(d, xp=2048, wp=8192)

def setup_kv(a, d):
    srd(a, d['xs'], 4, SIZES['ckv'])
    w = d['ws']
    a("s_cmp_eq_u32 s13, 0")
    a(f"s_cselect_b32 s{w}, s8, s10")
    a(f"s_cselect_b32 s{w+1}, s9, s11")
    a(f"s_and_b32 s{w+1}, s{w+1}, 0xffff")
    a(f"s_mov_b32 s{w+2}, {SIZES['wuk']}")
    a(f"s_mov_b32 s{w+3}, 0x20000")
    e1.setup_gl(a, d)
    a(f"s_lshl_b32 {d['sx']}, s14, 19")
    a(f"s_lshl_b32 {d['sw']}, s15, 9")

def kv_out_base(a):
    a("s_and_b32 s17, s16, 1")
    a("s_lshr_b32 s18, s16, 1")
    a("s_lshl_b32 s39, s15, 20")
    a("s_lshl_b32 s40, s14, 17")
    a("s_add_u32 s39, s39, s40")
    a("s_lshl_b32 s40, s17, 16")
    a("s_add_u32 s39, s39, s40")
    a("s_add_u32 s17, s13, 12")
    a("s_lshl_b32 s40, s18, s17")
    a("s_add_u32 s39, s39, s40")
    a("s_lshl_b32 s40, s13, 24")
    a("s_add_u32 s39, s39, s40")
    a("s_lshr_b32 s40, 8192, s13")
    a("s_add_u32 s19, s39, s40")

def init_done(a):
    sk = a.label("noinit")
    a("s_lshl_b32 s17, s16, 8")
    a("s_add_u32 s17, s17, s2")
    a("s_cmp_ge_u32 s17, 8")
    a(f"s_cbranch_scc1 {sk}")
    srd(a, 56, 68, 256)
    a("s_lshl_b32 s17, s2, 2")
    a(f"v_mov_b32 v{e1.T}, 1")
    a(f"v_mov_b32 v{e1.T+1}, 0")
    a("s_mov_b64 exec, 1")
    a(f"buffer_store_dword v{e1.T}, v{e1.T+1}, s[56:59], s17 offen sc1")
    a("s_mov_b64 exec, -1")
    a(f"{sk}:")

PFD = int(__import__('os').environ.get('PFD', 5))
OTHER = [('x', 44, 70), ('wq', 46, 141), ('w1', 48, 16), ('w2', 50, 16), ('w3', 52, 62), ('w4', 54, 62), ('wo', 56, 141)]
def setup_sweep(a, d):
    L = f"v{LANE}"; t = e1.T
    w0 = a.label("sw0"); w1 = a.label("sw1"); dn = a.label("swd")
    a("s_cmp_eq_u32 s16, 0")
    a(f"s_cbranch_scc1 {w0}")
    a("s_cmp_eq_u32 s16, 1")
    a(f"s_cbranch_scc1 {w1}")
    a("s_lshl_b32 s17, s2, 1")
    a("s_add_u32 s17, s17, s16")
    a("s_sub_u32 s17, s17, 2")
    start = 0
    for i, (nm, p, cnt) in enumerate(OTHER):
        if i == 0:
            a(f"s_mov_b32 s60, s{p}"); a(f"s_mov_b32 s61, s{p+1}"); a(f"s_mov_b32 s62, {SIZES[nm]}"); a("s_mov_b32 s18, 0")
        else:
            a(f"s_cmp_ge_u32 s17, {start}")
            a(f"s_cselect_b32 s60, s{p}, s60"); a(f"s_cselect_b32 s61, s{p+1}, s61")
            a(f"s_cselect_b32 s62, {SIZES[nm]}, s62"); a(f"s_cselect_b32 s18, {start}, s18")
        assert cnt * 208 * 128 >= SIZES[nm]
        start += cnt
    a("s_sub_u32 s17, s17, s18")
    a(f"s_mul_i32 s64, s17, {208*128}")
    a("s_movk_i32 s65, 2048")
    a(f"v_lshlrev_b32 v252, 5, {L}")
    a(f"s_branch {dn}")
    a(f"{w0}:")
    a(f"s_mov_b32 s60, s{d['xs']}"); a(f"s_mov_b32 s61, s{d['xs']+1}"); a(f"s_mov_b32 s62, {SIZES['ckv']}")
    a("s_bfe_u32 s17, s42, 0x20002")
    a("s_lshl_b32 s17, s17, 17")
    a("s_lshl_b32 s64, s14, 19")
    a("s_add_u32 s64, s64, s17")
    a("s_add_u32 s64, s64, 384")
    a("s_movk_i32 s65, 128")
    a(f"v_lshlrev_b32 v252, 11, {L}")
    a(f"s_branch {dn}")
    a(f"{w1}:")
    a(f"s_mov_b32 s60, s{d['ws']}"); a(f"s_mov_b32 s61, s{d['ws']+1}"); a(f"s_mov_b32 s62, {SIZES['wuk']}")
    a("s_lshl_b32 s64, s14, 16")
    a("s_lshl_b32 s17, s15, 9")
    a("s_add_u32 s64, s64, s17")
    a(f"s_add_u32 s64, s64, {3*64*8192}")
    a(f"s_mov_b32 s65, {64*8192}")
    a(f"v_lshrrev_b32 v252, 3, {L}")
    a("v_lshlrev_b32 v252, 13, v252")
    a(f"v_and_b32 v{t}, 7, {L}")
    a(f"v_lshl_add_u32 v252, v{t}, 6, v252")
    a(f"{dn}:")
    a("s_and_b32 s61, s61, 0xffff")
    a("s_mov_b32 s63, 0x20000")
SW = ["buffer_load_dword v253, v252, s[60:63], s64 offen", "s_add_u32 s64, s64, s65"]

def gen(label, timing=False, adj=0, tb=0, sweep=True, ta=1):
    a = Asm()
    a.begin_kernel(label)
    done = a.label("done")
    a("s_cmp_lt_u32 s2, 256")
    a("s_cbranch_scc1 go")
    a("s_endpgm")
    a("go:")
    a("s_getpc_b64 s[100:101]")
    a("s_sub_u32 s100, s100, 4")
    a("s_subb_u32 s101, s101, 0")
    a("s_load_dwordx2 s[4:5], s[0:1], 8")
    a("s_load_dwordx4 s[8:11], s[0:1], 24")
    a("s_load_dwordx2 s[6:7], s[0:1], 112")
    a("s_load_dwordx2 s[68:69], s[0:1], 104")
    a("s_load_dwordx2 s[44:45], s[0:1], 0")
    a("s_load_dwordx2 s[46:47], s[0:1], 16")
    a("s_load_dwordx4 s[48:51], s[0:1], 56")
    a("s_load_dwordx4 s[52:55], s[0:1], 72")
    a("s_load_dwordx2 s[56:57], s[0:1], 40")
    if timing: stamp_begin(a)
    a("s_and_b32 s12, s2, 7")
    a("s_lshr_b32 s42, s2, 3")
    a("v_lshrrev_b32 v1, 6, v0")
    a(f"v_and_b32 v{LANE}, 63, v0")
    a("v_readfirstlane_b32 s16, v1")
    if CPF:
        code_pf_addr(a, 2)
        a(code_pf(3, 2))
    a("s_bfe_u32 s14, s42, 0x10002")
    a("s_lshl_b32 s15, s12, 1")
    a("s_add_u32 s15, s15, s14")
    a("s_lshr_b32 s14, s42, 4")
    a("s_lshl_b32 s14, s14, 2")
    a("s_and_b32 s13, s42, 3")
    a("s_add_u32 s14, s14, s13")
    a("s_bfe_u32 s13, s42, 0x10003")
    a("s_waitcnt lgkmcnt(0)")
    dkv = kv_desc(DA)
    srd(a, 28, 6, WS_SIZE)
    sk = a.label("noclr")
    a("s_cmp_ge_u32 s2, 8")
    a(f"s_cbranch_scc1 {sk}")
    a("v_lshlrev_b32 v0, 4, v0")
    for i in range(4): a(f"v_mov_b32 v{4+i}, 0")
    a("s_lshl_b32 s17, s2, 12")
    a(f"s_add_u32 s17, s17, {WS_FLAG}")
    a("buffer_store_dwordx4 v[4:7], v0, s[28:31], s17 offen sc1")
    a(f"{sk}:")
    setup_kv(a, dkv)
    e1.prologue_dma(a, dkv)
    npre = 0
    if sweep:
        setup_sweep(a, dkv)
        npre = 0
    kv_out_base(a)
    a("s_mov_b32 s66, s13")
    a("s_lshl_b32 s15, s12, 1")
    a("s_add_u32 s15, s15, s13")
    a("s_and_b32 s14, s42, 7")
    a("s_lshr_b32 s13, s42, 4")
    a("s_lshl_b32 s3, s2, 7")
    a(f"s_add_u32 s3, s3, {WS_FLAG}")
    a("s_lshl_b32 s43, s12, 4")
    a("s_and_b32 s17, s42, 15")
    a("s_add_u32 s43, s43, s17")
    e1.setup_lds(a)
    lv = a.label("vpath"); att = a.label("att")
    sw = SW; nsw = 1
    def kv_head(isV):
        a(f"s_waitcnt vmcnt(16)")
        a("s_barrier")
        if timing: stamp_mid(a, 0)
        for r in e1.reads(0, 0, 0): a(r)
        e1.kstep(a, 0, isV, dkv, first=True, st=(sw * (npre + 1) if sw else None), nvm=nsw + npre, post=lambda: init_done(a))
        if tb == 9: stamp_mid(a, 3)
        e1.steps(a, 1, 13, isV, dkv, st=sw, nvm=nsw)
        if tb == 9: stamp_mid(a, 5)
        srd(a, 56, 68, 256)
        a(f"v_lshlrev_b32 v252, 2, v{LANE}")
        code_pf_addr(a, e1.T + 3)
        e1.kstep(a, 1, isV, dkv, st=[flag_load(254, 252, 56)] + ([code_pf(e1.T + 4, e1.T + 3)] if CPF else []),
                 post=lambda: check(a, 254, 252, 0xff, 1, srdn=56))
        m_attn.entry_flags(a, 252, 253, e1.T)
        if tb == 9: stamp_mid(a, 7)
    dq = dict(DB, xp=896, wp=8192, sx2="s56")
    B = m_b12.B12(a, "s43", e1.VL16, tb)
    qrest = a.label("qrest"); b12l = a.label("b12")
    a("s_cmp_lg_u32 s66, 0")
    a(f"s_cbranch_scc1 {lv}")
    for isV in (0, 1):
        if isV: a(f"{lv}:")
        kv_head(isV)
        la = a.label("atype")
        a("s_cmp_ge_u32 s42, 16")
        a(f"s_cbranch_scc1 {la}")
        a("s_mov_b64 s[58:59], s[46:47]")
        srd(a, 44, 44, SIZES['x'])
        srd(a, 48, 58, SIZES['wq'])
        e1.setup_gl(a, dq)
        a(f"s_mul_i32 s52, s14, {128*896}")
        a(f"s_sub_u32 s56, {15*128*896}, s52")
        a("s_lshl_b32 s53, s15, 9")
        a(f"s_mov_b32 s54, {f2u(math.log2(math.e) / 16)}")
        a("s_mov_b32 s55, s54")
        e1.kstep(a, 0, isV, dq)
        e1.kstep(a, 1, isV, dq)
        if timing: stamp_mid(a, 1)
        e1.kstep(a, 0, 0, dq, seam=(isV, None, None))
        a(f"s_branch {qrest}")
        a(f"{la}:")
        a("s_load_dwordx2 s[46:47], s[0:1], 88")
        a("s_and_b32 s17, s42, 15")
        a("s_lshl_b32 s17, s17, 2")
        a("s_add_u32 s17, s17, s16")
        a(f"s_mul_i32 s64, s17, {49*128}")
        a(f"v_lshlrev_b32 v{e1.T}, 7, v{LANE}")
        srd(a, 56, 48, SIZES['w1'])
        srd(a, 60, 50, SIZES['w2'])
        e1.kstep(a, 0, isV, st=[f"buffer_load_dword v{e1.T+1}, v{e1.T}, s[56:59], s64 offen"], nvm=1,
                 st1=lambda: [f"buffer_load_dword v{e1.T+1}, v{e1.T}, s[60:63], s64 offen"])
        e1.kstep(a, 1, isV, last=True)
        a("s_waitcnt vmcnt(0)")
        if timing: stamp_mid(a, 1)
        a("s_barrier")
        a("s_mov_b32 s38, s19")
        g0, g1 = B.setup()
        a("s_mov_b32 s19, s38")
        prs = e1.pairs(isV)
        body = []
        for n in range(24): body += e1.pack_ops(prs[n][0], prs[n][1], e1.PK + 4 * n)
        for x in mix(body, g0 + g1): a(x)
        for n in range(24, 32):
            for x in e1.pack_ops(prs[n][0], prs[n][1], 4 * (n - 24)) + e1.store_n(4 * (n - 24), n): a(x)
        a(f"s_branch {b12l}")
    a(f"{qrest}:")
    if tb == 1: stamp_mid(a, 3)
    for p in range(3):
        e1.kstep(a, (p + 1) & 1, 0, dq, st=e1.deferred(0, None, p), nvm=8)
        if tb == 1: stamp_mid(a, 4 + p)
    e1.kstep(a, 0, 0, dq, post=lambda: set_flag(a, ST_KV, e1.T))
    if tb == 1: stamp_mid(a, 7)
    rg = []
    def post21():
        check(a, 254, 252, "s10", "v253")
        rg.extend(m_attn.setup(a, adj))
    flat = lambda gs: [x for g in gs for x in g]
    e1.kstep(a, 1, 0, st=[flag_load(254, 252)], post=post21, st1=lambda: flat(rg[:12]))
    e1.kstep(a, 0, 0, last=True, st=flat(rg[12:]))
    if timing: stamp_mid(a, 2)
    a("s_barrier")
    a("s_and_b32 s17, s16, 1")
    a("s_lshl_b32 s19, s17, 16")
    a("s_lshr_b32 s18, s16, 1")
    a("s_lshl_b32 s18, s18, 12")
    a("s_add_u32 s19, s19, s18")
    a(f"v_add_u32 v{e1.T}, s19, v{e1.VL16}")
    a("s_lshl_b32 s17, s17, 14")
    a(f"v_add_u32 v{e1.T+1}, s17, v{e1.VL16}")
    a(f"v_add_u32 v{e1.T+2}, 0x10000, v{e1.T+1}")
    prs = e1.pairs(0)
    for n in range(16):
        dst = e1.PK + 4 * (n % 4)
        for o in e1.pack_ops(prs[n][0], prs[n][1], dst, "s[54:55]"): a(o)
        a(f"ds_write_b128 v{e1.T}, {vr(dst)} offset:{prs[n][2]}")
    for n in range(16, 32):
        for o in e1.pack_ops(prs[n][0], prs[n][1], 4 * (n - 16), "s[54:55]"): a(o)
    for r in range(2):
        sk = a.label("nord")
        a("s_waitcnt lgkmcnt(0)")
        a("s_barrier")
        a("s_cmp_lt_u32 s16, 2" if r else "s_cmp_ge_u32 s16, 2")
        a(f"s_cbranch_scc1 {sk}")
        for i in range(16): a(f"ds_read_b128 {ar(128+i*4)}, v{e1.T+2} offset:{i*1024}")
        for i in range(16): a(f"ds_read_b128 {ar(i*4)}, v{e1.T+1} offset:{i*1024}")
        a(f"{sk}:")
        if r == 0:
            a("s_waitcnt lgkmcnt(0)")
            a("s_barrier")
            for n in range(16): a(f"ds_write_b128 v{e1.T}, {vr(4*n)} offset:{prs[n][2]}")
            a("s_waitcnt vmcnt(0)")
    a("s_waitcnt lgkmcnt(0)")
    for x in flat(m_attn.q_ops("store")): a(x)
    a(f"s_branch {att}")
    a(f"{b12l}:")
    stores = [[x.replace("s19", "s38") for x in e1.store_n(e1.PK + 4 * n, n)] for n in range(24)]
    def tail_fn():
        check(a, 254, 252, "s10", "v253", sctr="s36")
        g = m_attn.setup(a, adj)
        q = m_attn.q_ops("load")
        return q + g
    B.body(8, stores, {17: lambda: set_flag(a, ST_KV, 139)}, {25: [[flag_load(254, 252)]]}, tail_fn)
    if timing: stamp_mid(a, 2)
    a("s_waitcnt vmcnt(12)")
    a("s_barrier")
    a(f"{att}:")
    tail = m_e2.Tail(a, ta if (timing and not tb and ta != 2) else 0)
    sites = m_attn.gen_attn(a, ta if (timing and not tb) else 0, tail)
    tail.final()
    if timing: stamp_end(a, 0, done)
    a(f"{done}:")
    a("s_endpgm")
    a("code_end:")
    m_attn.emit_slow(a, sites)
    a.end_kernel(label, 512, 256, 102)
    a.launch(label, (256,1,1), (256,1,1), 163840)
    return a

if __name__ == "__main__":
    opts = dict(x.split("=") for x in sys.argv[2:] if "=" in x)
    import asmlib
    if "dbgwg" in opts: asmlib.DBGWG = int(opts["dbgwg"])
    m_attn.DBG.update(opts.get("dbg", "").split(","))
    e1.STFL = opts.get("stfl", "sc1").replace("none", "")
    a = gen(NAME + "_kernel", timing=("t" in sys.argv[2:]), adj=int(opts.get("adj", 0)),
            tb=int(opts.get("tb", 0)), sweep=int(opts.get("sweep", 1)), ta=int(opts.get("ta", 1)))
    txt = a.text()
    if "single" in sys.argv[2:]:
        txt = txt.replace(f"; @launch kernel={NAME}_kernel ", "; @launch ")
    open(sys.argv[1], "w").write(txt)
```

```python
NAME = "gated_mix__compressed_kv_cla__mixer_s_mlp__prompt"

HEADER = """; Kernarg layout (120 bytes, ptrs only, base s[0:1]):
;   32 A_w_uv (1024,16,256) | 40 A_w_o (16,256,448) | 48 B_x | 56 B_w1 (448,448) | 64 B_w2 (448,448)
"""

class Asm:
    def __init__(self):
        self.lines = []
        self.kernels = []
        self.launches = []
        self._lab = 0
    def __call__(self, s=""):
        for l in s.split("\n"):
            l = l.strip()
            if l:
                self.lines.append(l)
    def label(self, base="L"):
        self._lab += 1
        return f"{base}_{self._lab}"
    def begin_kernel(self, label):
        self.lines.append(f".globl {label}")
        self.lines.append(".p2align 8")
        self.lines.append(f".type {label},@function")
        self.lines.append(f"{label}:")
    def end_kernel(self, label, vgpr, accum, sgpr=102):
        self.kernels.append((label, vgpr, accum, sgpr))
    def launch(self, label, grid, block, lds):
        self.launches.append((label, grid, block, lds))
    def text(self):
        out = [HEADER.rstrip("\n")]
        for (label, g, b, lds) in self.launches:
            out.append(f"; @launch kernel={label} grid=({g[0]},{g[1]},{g[2]}) block=({b[0]},{b[1]},{b[2]}) lds={lds}")
        out.append('.amdgcn_target "amdgcn-amd-amdhsa--gfx950"')
        out.append(".text")
        out.append(".macro mf d, a, b, c")
        out.append("v_mfma_f32_16x16x32_bf16 \\d, \\a, \\b, \\c")
        out.append(".endm")
        out += [l.replace("v_mfma_f32_16x16x32_bf16 ", "mf ").replace(", ", ",") if l.startswith("v_mfma_f32_16x16x32") else l for l in self.lines]
        out.append('.section .rodata,"a"')
        for (label, vgpr, accum, sgpr) in self.kernels:
            out.append(".p2align 6")
            out.append(f".amdhsa_kernel {label}")
            out.append(f"  .amdhsa_next_free_vgpr {vgpr}")
            out.append(f"  .amdhsa_next_free_sgpr {sgpr}")
            out.append(f"  .amdhsa_accum_offset {accum}")
            out.append("  .amdhsa_group_segment_fixed_size 0")
            out.append("  .amdhsa_kernarg_size 120")
            out.append("  .amdhsa_user_sgpr_count 2")
            out.append("  .amdhsa_user_sgpr_kernarg_segment_ptr 1")
            out.append("  .amdhsa_system_sgpr_workgroup_id_x 1")
            out.append("  .amdhsa_float_denorm_mode_32 3")
            out.append(".end_amdhsa_kernel")
        return "\n".join(out) + "\n"

KARG = dict(x=0, ckv=8, wq=16, wuk=24, wuv=32, wo=40, bx=48, w1=56, w2=64, w3=72, w4=80, gw=88, out=96, dbg=104, ws=112)
SIZES = dict(x=2048*448*2, ckv=2048*1024*2, wq=448*4096*2, wuk=1024*4096*2, wuv=1024*4096*2, wo=4096*448*2,
             bx=2048*448*2, w1=448*448*2, w2=448*448*2, w3=448*1792*2, w4=1792*448*2, gw=448*2,
             out=2048*448*2, dbg=256, ws=268435456)

def srd(a, d, p, size):
    a(f"s_mov_b32 s{d}, s{p}")
    a(f"s_and_b32 s{d+1}, s{p+1}, 0xffff")
    a(f"s_mov_b32 s{d+2}, {size}")
    a(f"s_mov_b32 s{d+3}, 0x20000")


STAMP_OFF = 200 << 20
DBGWG = None
RT = False
def stamp_begin(a):
    a("s_memtime s[70:71]")
    a("s_memrealtime s[72:73]")
    for i in range(8):
        a(f"s_mov_b32 s{74+2*i}, 0")
def stamp_mid(a, i):
    a(f"s_mem{'real' if RT else ''}time s[{74+2*i}:{75+2*i}]")
def stamp_end(a, kidx, done, wave_s="s16", wsel=0):
    a("s_waitcnt vmcnt(0)")
    a("s_memtime s[90:91]")
    a("s_memrealtime s[92:93]")
    a("s_load_dwordx2 s[94:95], s[0:1], 112")
    a("s_waitcnt lgkmcnt(0)")
    a("s_sub_u32 s90, s90, s70")
    a(f"s_cmp_lg_u32 {wave_s}, {wsel}")
    a(f"s_cbranch_scc1 {done}")
    srd(a, 96, 94, 268435456)
    a("v_mov_b32 v4, s72")
    a("v_mov_b32 v5, s92")
    a("v_mov_b32 v6, s90")
    a("v_mov_b32 v7, 0")
    for i in range(8):
        a(f"s_sub_u32 s{74+2*i}, s{74+2*i}, {'s72' if RT else 's70'}")
        a(f"v_mov_b32 v{8+i}, s{74+2*i}")
    a("s_lshl_b32 s91, s2, 6")
    a(f"s_add_u32 s91, s91, {STAMP_OFF + kidx * 65536}")
    a("v_mov_b32 v3, 0")
    a("buffer_store_dwordx4 v[4:7], v3, s[96:99], s91 offen")
    a("buffer_store_dwordx4 v[8:11], v3, s[96:99], s91 offen offset:16")
    a("buffer_store_dwordx4 v[12:15], v3, s[96:99], s91 offen offset:32")
    if DBGWG is not None:
        a(f"s_cmp_lg_u32 s2, {DBGWG}")
        a(f"s_cbranch_scc1 {done}")
        a("s_load_dwordx2 s[94:95], s[0:1], 104")
        a("s_waitcnt lgkmcnt(0)")
        srd(a, 96, 94, 256)
        a("v_sub_u32 v16, v5, v4")
        a("v_mov_b32 v17, v6")
        a("v_mov_b32 v18, v8")
        a("v_mov_b32 v19, v9")
        a("v_mov_b32 v20, v11")
        a("v_mov_b32 v21, v12")
        a("v_mov_b32 v22, v14")
        a("v_mov_b32 v23, v15")
        a("buffer_store_dwordx4 v[16:19], v3, s[96:99], 0 offen offset:32")
        a("buffer_store_dwordx4 v[20:23], v3, s[96:99], 0 offen offset:48")
def gen_stampk(a, label, kidx):
    a.begin_kernel(label)
    d = a.label("st_done")
    stamp_begin(a)
    a("v_lshrrev_b32 v1, 6, v0")
    a("s_nop 0")
    a("v_readfirstlane_b32 s16, v1")
    stamp_end(a, kidx, d)
    a(f"{d}:")
    a("s_endpgm")
    a.end_kernel(label, 16, 16, 102)
```

```python
from m_common import *
from m_b12 import pk, mix
flat = lambda gs: [x for g in gs for x in g]

O = 0
def Oreg(b, dt): return (b * 16 + dt) * 4
def S(buf, e, b): return 128 + buf * 16 + (e * 2 + b) * 4
def P(buf, b): return 160 + buf * 8 + b * 4
def NEGM(b): return 176 + b * 4
def E(e, b): return 184 + (e * 2 + b) * 4
PS = 200; LS = 202; VK = 204; VV = 205; VL16 = 206; VD = 207; VNINF = 208; T = 210
def Q(b, k): return 128 + (b * 8 + k) * 4
def FR(n): return 192 + (n % 16) * 4
THR = 0x4e800000
KA = 0x18000; KX = 0x38000; VA = 0x8000; VX = 0x8000
PART_W = 17 * 1024
FL = 220
DBG = set()

def pv_mfmas(pbuf, f0):
    out = []
    for dt in range(16):
        for b in range(2):
            out.append(f"v_mfma_f32_16x16x32_bf16 {vr(Oreg(b,dt))}, {ar(FR(f0+dt))}, {vr(P(pbuf,b))}, {vr(Oreg(b,dt))}")
    return out
def qk_mfmas(sbuf, f0, zero=False):
    out = []
    for e in range(2):
        for k in range(8):
            for b in range(2):
                C = vr(S(sbuf, e, b)) if k else ("0" if zero else vr(NEGM(b)))
                out.append(f"v_mfma_f32_16x16x32_bf16 {vr(S(sbuf,e,b))}, {ar(FR(f0+e*8+k))}, {ar(Q(b,k))}, {C}")
    return out
def kread(par, i, f): return f"ds_read_b128 {ar(FR(f))}, v{VK} offset:{par*16384 + i*1024}"
def vread(par, i, f): return f"ds_read_b128 {ar(FR(f))}, v{VV} offset:{par*16384 + i*1024}"

def mask_ops(sbuf):
    cm = []; sel = []
    idx = {}
    n = 0
    out = []
    for d in (-1, 0, 1):
        for r in range(4):
            sp = 44 + 2 * (n % 12); n += 1
            idx[(d, r)] = sp
            cm.append(f"v_cmp_gt_i32 s[{sp}:{sp+1}], {16*d+r}, v{VD}")
    for e in range(2):
        for b in range(2):
            for r in range(4):
                sp = idx[(e - b, r)]
                sel.append(f"v_cndmask_b32 v{S(sbuf,e,b)+r}, v{S(sbuf,e,b)+r}, v{VNINF}, s[{sp}:{sp+1}]")
    return cm, sel

def softmax_ops(sbuf, pbuf):
    out = []
    groups = [(0, 0), (0, 1), (1, 0), (1, 1)]
    def post(e, b):
        t = E(e, b)
        o = []
        if e == 0:
            o.append(f"v_add_f32 v{PS+b}, v{t}, v{t+1}")
        else:
            o.append(f"v_add_f32 v{PS+b}, v{PS+b}, v{t}")
            o.append(f"v_add_f32 v{PS+b}, v{PS+b}, v{t+1}")
        o.append(f"v_cvt_pk_bf16_f32 v{P(pbuf,b)+2*e}, v{t}, v{t+1}")
        o.append(f"v_add_f32 v{PS+b}, v{PS+b}, v{t+2}")
        o.append(f"v_cvt_pk_bf16_f32 v{P(pbuf,b)+2*e+1}, v{t+2}, v{t+3}")
        o.append(f"v_add_f32 v{PS+b}, v{PS+b}, v{t+3}")
        return o
    prev = []
    for (e, b) in groups:
        ex = [f"v_exp_f32 v{E(e,b)+r}, v{S(sbuf,e,b)+r}" for r in range(4)]
        m = []
        pi = 0
        for i, x in enumerate(ex):
            m.append(x)
            take = (len(prev) * (i + 1)) // 4
            while pi < take:
                m.append(prev[pi]); pi += 1
        out += m
        prev = post(e, b)
    out.append("s_nop 0")
    out += prev
    return out

def rowmax(a, sbuf, dst):
    for b in range(2):
        s0, s1 = S(sbuf, 0, b), S(sbuf, 1, b)
        a(f"v_max3_f32 v{dst+b}, v{s0}, v{s0+1}, v{s0+2}")
        a(f"v_max3_f32 v{dst+b}, v{dst+b}, v{s0+3}, v{s1}")
        a(f"v_max3_f32 v{dst+b}, v{dst+b}, v{s1+1}, v{s1+2}")
        a(f"v_max_f32 v{dst+b}, v{dst+b}, v{s1+3}")
    xlane_reduce(a, "v_max_f32", [dst, dst + 1], dst + 2)

def slow_path(a, sbuf, has_next):
    a("s_nop 15")
    rowmax(a, sbuf, T)
    for b in range(2):
        a(f"v_max_f32 v{T+b}, 0, v{T+b}")
        a(f"v_sub_f32 v{T+2+b}, 0, v{T+b}")
    for b in range(2):
        a(f"v_exp_f32 v{T+2+b}, v{T+2+b}")
    for b in range(2):
        for e in range(2):
            for r in range(4):
                a(f"v_sub_f32 v{S(sbuf,e,b)+r}, v{S(sbuf,e,b)+r}, v{T+b}")
                if has_next:
                    a(f"v_sub_f32 v{S(sbuf^1,e,b)+r}, v{S(sbuf^1,e,b)+r}, v{T+b}")
        for r in range(4):
            a(f"v_sub_f32 v{NEGM(b)+r}, v{NEGM(b)+r}, v{T+b}")
        a(f"v_mul_f32 v{LS+b}, v{LS+b}, v{T+2+b}")
        for i in range(64):
            a(f"v_mul_f32 v{b*64+i}, v{b*64+i}, v{T+2+b}")
    for x in softmax_ops(sbuf, sbuf): a(x)
    a("s_nop 1")

def adv(r):
    return f"s_add_u32 {r}, {r}, 16384\ns_cmp_eq_u32 {r}, s4\ns_cselect_b32 {r}, s34, {r}"
def dma4(srdn, soff):
    return [f"buffer_load_dwordx4 v{VL16}, s[{srdn}:{srdn+3}], {soff} offen offset:{i*1024} sc1 lds" for i in range(4)]
def dma_ops(par):
    o = adv("s33").split("\n") + [f"s_add_u32 m0, s40, {par*16384}"] + adv("s32").split("\n")[:1] + dma4(24, "s33")
    o += adv("s32").split("\n")[1:] + [f"s_add_u32 m0, s41, {par*16384}", "s_nop 0"] + dma4(20, "s32")
    if "nodma" in DBG: o = [x for x in o if not x.startswith("buffer")]
    return o

def ring_dma(sc, n, par):
    sp = n // 8
    av = adv("s33").split("\n"); ak = adv("s32").split("\n")
    dv = dma4(24, "s33"); dk = dma4(20, "s32")
    if "nodma" in DBG: dv = dk = ["s_nop 0"] * 4
    sc.fix(0, av[0]); sc.fix(1, av[1]); sc.fix(1, av[2]); sc.fix(2, f"s_add_u32 m0, s40, {par*16384}")
    for i in range(4):
        sc.fix(4 + sp * i, dv[i]); sc.fix(min(n - 1, 4 + sp * (4 + i)), dk[i])
    k0 = 4 + sp * 4
    if n == 64:
        sc.fix(k0 - 12, ak[0]); sc.fix(k0 - 10, ak[1]); sc.fix(k0 - 4, ak[2]); sc.fix(k0 - 2, f"s_add_u32 m0, s41, {par*16384}")
    else:
        sc.fix(k0 - 3, ak[0]); sc.fix(k0 - 3, ak[1]); sc.fix(k0 - 2, ak[2]); sc.fix(k0 - 1, f"s_add_u32 m0, s41, {par*16384}")
    if par == 1:
        sc.fix(k0 + 4, f"s_xor_b32 s40, s40, {hex(VX)}"); sc.fix(k0 + 6, f"s_xor_b32 s41, s41, {hex(KX)}")

def step(a, par, kind, masked, slow_sites, tailops=(), other=None, extra=None, post=None, entry=None):
    has_pv = kind != 'F'; has_qk = kind != 'L'
    mf = []; rd = []
    if has_pv:
        mf += pv_mfmas(par ^ 1, 0)
        rd += [("v", vread(par ^ 1, i, i), i) for i in range(16)]
    if has_qk:
        mf += qk_mfmas(par ^ 1, 0)
        rd += [("k", kread(par ^ 1, i, i), i) for i in range(16)]
    rd += [("v", vread(par, i, i), i) for i in range(8)]
    rd = rd[8:]
    sc = Sched(mf)
    n = len(mf)
    for i, (kd, ins, fi) in enumerate(rd):
        sc.fix(2 * i, ins)
        if kd == "k" and fi == 15 and par == 0: sc.fix(2 * i + 1, f"v_xor_b32 v{VK}, {hex(KX)}, v{VK}")
        if kd == "v" and fi == 15 and par == 0: sc.fix(2 * i + 1, f"v_xor_b32 v{VV}, {hex(VX)}, v{VV}")
    for g in range(1, n // 8):
        sc.fix(8 * g - 2, "s_waitcnt lgkmcnt(4)")
    if kind == 'F' or other is not None: a("s_waitcnt lgkmcnt(4)")
    else: a("s_waitcnt vmcnt(12) lgkmcnt(4)")
    if entry: a(f"{entry}:")
    a("s_barrier")
    if post: post()
    if other is not None: sc.stream(other, 0, n)
    else: ring_dma(sc, n, par)
    if extra:
        for i, x in enumerate(extra): sc.fix(min(n - 1, 5 + (5 * i) // 2), x)
    sm = softmax_ops(par, par)
    if masked:
        cm, sel = mask_ops(par)
        sm = cm + [f"v_subrev_u32 v{VD}, 32, v{VD}"] + sel + sm
    if kind != 'F':
        sm = [f"v_add_f32 v{LS}, v{LS}, v{PS}", f"v_add_f32 v{LS+1}, v{LS+1}, v{PS+1}"] + sm
    chk = [f"v_max_f32 v{T}, v{PS}, v{PS+1}", f"v_cmp_nge_f32 vcc, s39, v{T}"]
    sc.stream(sm + chk, 1, n - 1)
    for x in tailops: sc.fix(n - 2, x)
    sc.emit(a)
    slow = a.label("slow"); back = a.label("back")
    a(f"s_cbranch_vccnz {slow}")
    a(f"{back}:")
    slow_sites.append((slow, back, par, has_qk))

def entry_flags(a, voff, vneed, t):
    L = f"v{LANE}"
    a(f"v_and_b32 v{voff}, 3, {L}")
    a(f"v_and_b32 v{t}, 12, {L}")
    a(f"v_xor_b32 v{t}, 8, v{t}")
    a(f"v_lshl_add_u32 v{voff}, v{t}, 1, v{voff}")
    a("s_and_b32 s17, s15, 1")
    a("s_lshl_b32 s17, s17, 5")
    a("s_add_u32 s17, s17, s12")
    a(f"v_lshl_add_u32 v{voff}, v{voff}, 3, s17")
    a(f"v_mov_b32 v{vneed}, {ST_KV}")
    a("s_and_b32 s17, s2, 127")
    a(f"v_writelane_b32 v{voff}, s17, 16")
    a(f"v_writelane_b32 v{vneed}, {ST_PUB}, 16")
    wg_to_off(a, voff)

def setup(a, adj):
    L = f"v{LANE}"
    a(f"v_lshlrev_b32 v{VL16}, 4, {L}")
    a("s_lshl_b32 s5, s15, 3")
    a("s_add_u32 s5, s5, s14")
    a("s_lshl_b32 s17, s14, 2")
    a(f"s_sub_u32 s34, {30 + adj}, s17")
    a("s_min_u32 s34, s34, 32")
    a("s_sub_u32 s8, 15, s14")
    a("s_sub_u32 s17, 64, s17")
    a("s_cmp_eq_u32 s13, 0")
    a("s_cselect_b32 s9, 0, s34")
    a("s_cselect_b32 s10, s34, s17")
    a("s_cselect_b32 s11, 0, 2")
    a("s_lshl_b32 s17, s15, 20")
    a("s_add_u32 s20, s6, s17")
    a("s_addc_u32 s21, s7, 0")
    a("s_and_b32 s21, s21, 0xffff")
    a("s_mov_b32 s22, 0x100000")
    a("s_mov_b32 s23, 0x20000")
    a(f"s_add_u32 s24, s20, {WS_V}")
    a("s_addc_u32 s25, s21, 0")
    a("s_mov_b32 s26, 0x100000")
    a("s_mov_b32 s27, 0x20000")
    a("s_lshl_b32 s40, s16, 12")
    a("s_lshl_b32 s32, s9, 14")
    a("s_add_u32 s32, s32, s40")
    a("s_mov_b32 s33, s32")
    a("s_lshl_b32 s4, s10, 14")
    a("s_add_u32 s4, s4, s40")
    a("s_cmp_eq_u32 s13, 0")
    a("s_cselect_b32 s34, s40, 0x70000000")
    a(f"s_add_u32 s41, s40, {KA}")
    a("s_lshl_b32 s38, s8, 2")
    a("s_add_u32 s38, s38, s16")
    a("s_lshl_b32 s38, s38, 14")
    a("s_add_u32 s38, s38, s17")
    a(f"s_add_u32 s38, s38, {WS_Q}")
    g = []
    def grp(lds, srdn, r, first):
        d = dma4(srdn, r)
        g.append([f"s_add_u32 m0, s40, {lds}", "s_nop 0" if first else adv(r), d[0]])
        for x in d[1:]: g.append([x])
    grp(KA, 20, "s32", True)
    grp(KA + 16384, 20, "s32", False)
    grp(VA, 24, "s33", True)
    grp(KA + 32768, 20, "s32", False)
    grp(VA + 16384, 24, "s33", False)
    grp(KA + 49152, 20, "s32", False)
    return g
def ring_groups_a():
    def grp(lds, srdn, k):
        d = dma4(srdn, "s36")
        return [[f"s_add_u32 m0, s40, {lds}", f"s_add_u32 s36, s32, {k*16384}", d[0]]] + [[x] for x in d[1:]]
    g = {f"K{k}": grp(KA + k * 16384, 20, k) for k in range(4)}
    g.update({f"V{k}": grp(VA + k * 16384, 24, k) for k in range(2)})
    return g, ["s_add_u32 s32, s32, 49152", "s_add_u32 s33, s33, 16384"]
def q_ops(op):
    g = []
    for c4 in range(4):
        for i in range(4):
            o = [f"buffer_{op}_dwordx4 {ar(128 + (c4*4+i)*4)}, v{VL16}, s[28:31], s38 offen offset:{i*1024} sc1"]
            if i == 3 and c4 < 3: o.append("s_add_u32 s38, s38, 4096")
            g.append(o)
    return g

NFIRST = 6
def gen_attn(a, timing, tail):
    L = f"v{LANE}"
    a(f"v_and_b32 v{T+9}, 15, {L}")
    a(f"v_lshrrev_b32 v{T+2}, 4, {L}")
    a(f"v_lshlrev_b32 v{T+2}, 2, v{T+2}")
    a(f"v_sub_u32 v{T+8}, v{T+9}, v{T+2}")
    a(f"v_mov_b32 v{VNINF}, 0xff800000")
    a(f"s_mov_b32 s39, {THR}")
    a(f"v_add_u32 v{VK}, {hex(KA)}, v{VL16}")
    a(f"v_add_u32 v{VV}, {hex(VA)}, v{VL16}")
    a(f"s_mov_b32 s35, {ST_PUB}")
    a(f"v_mov_b32 v{FL+1}, {WS_FLAG}")
    import m_e2
    a("s_load_dwordx2 s[68:69], s[0:1], 72")
    a("s_waitcnt lgkmcnt(0)")
    if timing in (1, 2): stamp_mid(a, 3)
    seg = a.label("seg")
    a(f"{seg}:")
    for i in range(16): a(kread(0, i, i))
    a("s_lshl_b32 s18, s8, 2")
    a("s_add_u32 s18, s18, s16")
    a("s_sub_u32 s17, s18, s9")
    a("s_lshl_b32 s17, s17, 5")
    a(f"v_add_u32 v{VD}, s17, v{T+8}")
    a(f"v_mov_b32 v{LS}, 0")
    a(f"v_mov_b32 v{LS+1}, 0")
    cm, sel = mask_ops(0)
    sc = Sched(qk_mfmas(0, 0, zero=True), cap=12)
    for g in range(4): sc.before(8 * g, f"s_waitcnt lgkmcnt({12 - 4*g if g < 2 else 4})")
    for i in range(8): sc.fix(16 + 2 * i, kread(1, i, i))
    sc.stream([f"v_pk_mov_b32 v[{2*i}:{2*i+1}], 0, 0" for i in range(64)] + cm, 0, 32)
    sc.emit(a)
    a("s_sub_u32 s17, s10, s9")
    a("s_lshr_b32 s17, s17, 1")
    a("s_sub_u32 s17, s17, 1")
    a("s_min_u32 s37, s17, 2")
    a("s_cmp_eq_u32 s11, 0")
    a("s_cselect_b32 s37, 0, s37")
    a("s_sub_u32 s19, s17, s37")
    a("s_min_u32 s36, s19, 1")
    a("s_sub_u32 s19, s19, s36")
    for x in sel: a(x)
    rowmax(a, 0, T)
    for b in range(2):
        for r in range(4):
            a(f"v_sub_f32 v{NEGM(b)+r}, 0, v{T+b}")
        for e in range(2):
            for r in range(4):
                a(f"v_sub_f32 v{S(0,e,b)+r}, v{S(0,e,b)+r}, v{T+b}")
    sites = []
    step(a, 0, 'F', False, sites)
    def publish():
        sk = a.label("nopub")
        a("s_cmp_eq_u32 s35, 0")
        a(f"s_cbranch_scc1 {sk}")
        a("s_waitcnt vmcnt(8)")
        a("s_barrier")
        set_flag(a, "s35", T)
        a("s_mov_b32 s35, 0")
        a(f"{sk}:")
    lm = a.label("lm"); lx = a.label("lx"); lmend = a.label("lmend"); lxend = a.label("lxend")
    if timing == 2: stamp_mid(a, 4)
    a("s_cmp_eq_u32 s36, 0")
    a(f"s_cbranch_scc1 {lmend}")
    lme = a.label("lme")
    a("s_waitcnt lgkmcnt(4)")
    a(f"s_branch {lme}")
    a(f"{lm}:")
    step(a, 1, 'M', False, sites, entry=lme)
    step(a, 0, 'M', False, sites, ["s_sub_u32 s36, s36, 1", "s_cmp_lg_u32 s36, 0"])
    a(f"s_cbranch_scc1 {lm}")
    publish()
    a("s_mov_b32 s36, s19")
    a("s_mov_b32 s19, 0")
    a("s_cmp_lg_u32 s36, 0")
    a(f"s_cbranch_scc1 {lm}")
    a(f"{lmend}:")
    publish()
    if timing == 2: stamp_mid(a, 5)
    a("s_lshl_b32 s17, s37, 1")
    a("s_add_u32 s17, s17, s18")
    a("s_add_u32 s17, s17, 1")
    a("s_sub_u32 s17, s17, s10")
    a("s_lshl_b32 s17, s17, 5")
    a(f"v_add_u32 v{VD}, s17, v{T+8}")
    a("s_cmp_eq_u32 s37, 0")
    a(f"s_cbranch_scc1 {lxend}")
    a("s_lshr_b32 s17, s12, 1")
    a("s_lshl_b32 s17, s17, 2")
    a("s_and_b32 s19, s42, 3")
    a("s_add_u32 s17, s17, s19")
    a("s_lshr_b32 s36, s12, 2")
    a("s_lshl_b32 s36, s36, 3")
    a("s_and_b32 s19, s42, 7")
    a("s_add_u32 s36, s36, s19")
    a(f"v_mov_b32 v{FL+1}, s36")
    a("s_mov_b64 exec, 0xffff")
    a(f"v_mov_b32 v{FL+1}, s17")
    a("s_mov_b64 exec, 0xff")
    a(f"v_mov_b32 v{FL+1}, s8")
    a("s_mov_b64 exec, -1")
    a(f"v_and_b32 v{T}, 1, v{FL+1}")
    a(f"v_and_b32 v{T+1}, 7, {L}")
    a(f"v_lshl_add_u32 v{T}, v{T}, 3, v{T+1}")
    a(f"v_lshrrev_b32 v{FL+1}, 1, v{FL+1}")
    a(f"v_lshl_add_u32 v{FL+1}, v{T}, 3, v{FL+1}")
    a(f"v_add_u32 v{FL+1}, 128, v{FL+1}")
    a("s_and_b32 s17, s2, 127")
    a(f"v_writelane_b32 v{FL+1}, s17, 24")
    wg_to_off(a, FL + 1)
    a(flag_load(FL, FL + 1))
    for x in flat(m_e2.poison_ops(a, VL16, 224, "s36")): a(x)
    a("s_mov_b32 s19, 1")
    a(f"{lx}:")
    step(a, 1, 'M', True, sites)
    step(a, 0, 'M', True, sites)
    h2 = a.label("h2done")
    a("s_cmp_eq_u32 s19, 0")
    a(f"s_cbranch_scc1 {h2}")
    a("s_mov_b32 s19, 0")
    a("s_waitcnt vmcnt(16)")
    check(a, FL, FL + 1, 0xffffff, ST_PUB, sctr="s36")
    a("s_lshl_b32 s17, s18, 7")
    a(f"s_add_u32 s17, s17, {WS_G}")
    a(f"v_lshlrev_b32 v{T+4}, 2, v{T+9}")
    a(f"buffer_load_dword v{T+6}, v{T+4}, s[28:31], s17 offen sc1")
    a(f"buffer_load_dword v{T+7}, v{T+4}, s[28:31], s17 offen offset:64 sc1")
    if "ts" in DBG: m_e2.tail_sweep(a, 224)
    code_pf_addr(a, 224)
    a(code_pf(223, 224))
    def part_addr():
        a(f"s_mul_i32 s17, s5, {4*PART_W}")
        a(f"s_mul_i32 s36, s16, {PART_W}")
        a("s_add_u32 s17, s17, s36")
        a(f"s_add_u32 s17, s17, {WS_PART}")
    def part_loads():
        part_addr()
        for c4 in range(4):
            for i in range(4):
                a(f"buffer_load_dwordx4 {ar((c4*4+i)*4)}, v{VL16}, s[28:31], s17 offen offset:{i*1024} sc1")
            a("s_add_u32 s17, s17, 4096")
        a(f"buffer_load_dwordx4 {ar(64)}, v{VL16}, s[28:31], s17 offen sc1")
    a(flag_load(FL, FL + 1))
    a(f"{h2}:")
    a("s_sub_u32 s37, s37, 1")
    a("s_cmp_lg_u32 s37, 0")
    a(f"s_cbranch_scc1 {lx}")
    a(f"{lxend}:")
    if timing == 2: stamp_mid(a, 6)
    def final_pv(fill):
        sc = Sched(pv_mfmas(1, 0), cap=12)
        for i in range(8): sc.fix(2 * i, vread(1, 8 + i, 8 + i))
        for g in range(4): sc.before(8 * g, f"s_waitcnt lgkmcnt({4 if g < 3 else 0})" if g != 2 else "s_waitcnt lgkmcnt(4)")
        sc.stream(fill, 0, 32)
        sc.emit(a)
    lsum = [f"v_add_f32 v{LS}, v{LS}, v{PS}", f"v_add_f32 v{LS+1}, v{LS+1}, v{PS+1}"]
    fin = a.label("fin")
    a("s_cmp_lg_u32 s11, 0")
    a(f"s_cbranch_scc1 {fin}")
    step(a, 1, 'L', False, sites)
    final_pv(lsum + [f"v_accvgpr_mov_b32 a{128+i}, a{i}" for i in range(64)])
    a(f"v_xor_b32 v{VV}, {hex(VX)}, v{VV}")
    xlane_reduce(a, "v_add_f32", [LS, LS + 1], T)
    part_addr()
    a(f"v_mov_b32 v{T}, v{NEGM(0)}")
    a(f"v_mov_b32 v{T+1}, v{NEGM(1)}")
    a(f"v_mov_b32 v{T+2}, v{LS}")
    a(f"v_mov_b32 v{T+3}, v{LS+1}")
    a("s_waitcnt vmcnt(0)")
    a("s_barrier")
    for n in range(16):
        for p in range(4): a(f"v_cvt_pk_bf16_f32 v{n*4+p}, v{n*8+2*p}, v{n*8+2*p+1}")
        a(f"buffer_store_dwordx4 {vr(n*4)}, v{VL16}, s[28:31], s17 offen offset:{(n%4)*1024} sc1")
        if n % 4 == 3: a("s_add_u32 s17, s17, 4096")
    a(f"buffer_store_dwordx4 {vr(T)}, v{VL16}, s[28:31], s17 offen sc1")
    a(f"s_mov_b32 s35, {ST_P}")
    a("s_mov_b32 s8, s14")
    a("s_mov_b32 s9, 0")
    a("s_lshl_b32 s10, s14, 2")
    a("s_add_u32 s10, s10, 4")
    a("s_mov_b32 s11, 1")
    a("s_lshl_b32 s4, s10, 14")
    a("s_add_u32 s4, s4, s34")
    a("s_mov_b32 s34, 0x70000000")
    a(f"s_branch {seg}")
    a(f"{fin}:")
    nop = a.label("nopart")
    a("s_waitcnt vmcnt(0)")
    a("s_cmp_lg_u32 s11, 2")
    a(f"s_cbranch_scc1 {nop}")
    check(a, FL, FL + 1, 1 << 24, ST_P, sctr="s36")
    part_loads()
    a(f"{nop}:")
    tail.pre_b3()
    step(a, 1, 'L', True, sites, other=flat(tail.take(4, 4)))
    cap = Asm()
    tail.a = cap
    tail.pre()
    tail.a = a
    pre = []
    for x in cap.lines:
        if x.startswith("s_cselect"): pre[-1] += "\n" + x
        else: pre.append(x)
    fl = mix(lsum + pre[:40], tail.take(4, 4))
    final_pv(fl)
    for x in pre[40:]: a(x)
    if timing in (1, 2): stamp_mid(a, 4 if timing == 1 else 7)
    xlane_reduce(a, "v_add_f32", [LS, LS + 1], T)
    nomerge = a.label("nomerge"); have = a.label("have"); common = a.label("common")
    SA = E(0, 0); SB = E(0, 0) + 4
    a("s_waitcnt vmcnt(32)")
    a(f"s_mul_i32 s9, s18, {2*CF_PITCH}")
    a("s_lshl_b32 s17, s15, 13")
    a("s_add_u32 s9, s9, s17")
    a(f"s_add_u32 s9, s9, {WS_C}")
    def cstore(n):
        o = [f"buffer_store_dwordx4 {vr(n*4)}, v{VL16}, s[28:31], s9 offen offset:{(n%4)*1024} sc1"]
        if n % 4 == 3 and n < 15: o.append(f"s_add_u32 s9, s9, {4096 if n % 8 == 3 else CF_PITCH - 4096}")
        return o
    a("s_cmp_eq_u32 s11, 1")
    a(f"s_cbranch_scc1 {nomerge}")
    for r in range(4): a(f"v_accvgpr_read_b32 v{T+r}, a{64+r}")
    for b in range(2):
        a(f"v_min_f32 v{T+4}, v{NEGM(b)}, v{T+b}")
        a(f"v_sub_f32 v{SA+2*b}, v{T+4}, v{NEGM(b)}")
        a(f"v_sub_f32 v{SB+2*b}, v{T+4}, v{T+b}")
    for b in range(2):
        a(f"v_exp_f32 v{SA+2*b}, v{SA+2*b}")
        a(f"v_exp_f32 v{SB+2*b}, v{SB+2*b}")
    a("s_nop 0")
    for b in range(2):
        a(f"v_mul_f32 v{LS+b}, v{LS+b}, v{SA+2*b}")
        a(f"v_fmac_f32 v{LS+b}, v{T+2+b}, v{SB+2*b}")
    for b in range(2): a(f"v_rcp_f32 v{T+b}, v{LS+b}")
    a("s_nop 0")
    for b in range(2): a(f"v_mul_f32 v{T+b}, v{T+b}, v{T+6+b}")
    for b in range(2):
        a(f"v_mul_f32 v{SA+2*b}, v{SA+2*b}, v{T+b}")
        a(f"v_mul_f32 v{SB+2*b}, v{SB+2*b}, v{T+b}")
    body = []
    for n in range(16):
        b = n // 8; r0 = n * 8; t = 128 + (n % 2) * 12
        for p in range(4): body.append(f"v_accvgpr_read_b32 v{t+8+p}, a{n*4+p}")
        for p in range(4): body.append(pk("mul", r0 + 2 * p, r0 + 2 * p, SA + 2 * b, bc=(1,)))
        for p in range(4):
            body.append(f"v_lshlrev_b32 v{t+2*p}, 16, v{t+8+p}")
            body.append(f"v_and_b32 v{t+2*p+1}, 0xffff0000, v{t+8+p}")
        for p in range(4): body.append(pk("fma", r0 + 2 * p, t + 2 * p, SB + 2 * b, r0 + 2 * p, bc=(1,)))
        for p in range(4): body.append(f"v_cvt_pk_bf16_f32 v{n*4+p}, v{r0+2*p}, v{r0+2*p+1}")
        body += cstore(n)
    for x in body: a(x)
    a(f"s_branch {common}")
    a(f"{nomerge}:")
    for b in range(2): a(f"v_rcp_f32 v{T+b}, v{LS+b}")
    a("s_nop 0")
    for b in range(2): a(f"v_mul_f32 v{SA+2*b}, v{T+b}, v{T+6+b}")
    body = []
    for n in range(16):
        b = n // 8; r0 = n * 8
        for p in range(4): body.append(pk("mul", r0 + 2 * p, r0 + 2 * p, SA + 2 * b, bc=(1,)))
        for p in range(4): body.append(f"v_cvt_pk_bf16_f32 v{n*4+p}, v{r0+2*p}, v{r0+2*p+1}")
        body += cstore(n)
    for x in body: a(x)
    a(f"{common}:")
    tail.log.add("c", 16)
    if timing == 1: stamp_mid(a, 5)
    if timing == 3: stamp_mid(a, 0)
    nob3 = a.label("nob3"); join = a.label("join")
    a("s_cmp_ge_u32 s42, 28")
    a(f"s_cbranch_scc1 {nob3}")
    tail.b3()
    a(f"s_branch {join}")
    a(f"{nob3}:")
    tail.nob3()
    a(f"{join}:")
    return sites

def emit_slow(a, sites):
    for (slow, back, par, has_next) in sites:
        a(f"{slow}:")
        slow_path(a, par, has_next)
        a(f"s_branch {back}")
```

```python
from m_common import *

SLOT = 28672
SB = [0, 65536, 32768, 98304]
XN = 131072
GWL = XN + 28672
STG = 65536
ST = STG + 16384
HP = 928

def pk(op, d, *srcs, bc=()):
    s = ", ".join((f"v[{x}:{x+1}]" if isinstance(x, int) else x) for x in srcs)
    hi = ",".join("0" if i in bc else "1" for i in range(len(srcs)))
    m = f" op_sel_hi:[{hi}]" if bc else ""
    return f"v_pk_{op}_f32 v[{d}:{d+1}], {s}{m}"

def gelu_pk(regs, tmp, c0, c1, one, post=None):
    o = []
    for i, r in enumerate(regs): o.append(pk("mul", tmp + 2 * i, r, r))
    for i, r in enumerate(regs): o.append(pk("fma", tmp + 2 * i, tmp + 2 * i, c1, c0, bc=(1,)))
    for i, r in enumerate(regs): o.append(pk("mul", tmp + 2 * i, tmp + 2 * i, r))
    for i in range(2 * len(regs)): o.append(f"v_exp_f32 v{tmp+i}, v{tmp+i}")
    if post is not None:
        for i, r in enumerate(regs): o.append(pk("mul", r, r, post, bc=(1,)))
    else: o.append("s_nop 0")
    for i, r in enumerate(regs): o.append(pk("add", tmp + 2 * i, tmp + 2 * i, one, bc=(1,)))
    for i in range(2 * len(regs)): o.append(f"v_rcp_f32 v{tmp+i}, v{tmp+i}")
    o.append("s_nop 0")
    for i, r in enumerate(regs): o.append(pk("mul", r, r, tmp + 2 * i))
    return o

def mix(main, groups):
    out = []; n = len(main); k = 0
    for i, x in enumerate(main):
        out.append(x)
        while k < len(groups) and (k + 1) * n <= (i + 1) * (len(groups) + 1):
            out += groups[k]; k += 1
    for g in groups[k:]: out += g
    return out

CS = 56; STT = 84; GR = 92; TM = 100
WG = 128; WR = 135; XRES = 100; T = 149

class B12:
    def __init__(self, a, sblk, VL16, timing=0):
        self.a = a; self.sblk = sblk; self.VL16 = VL16; self.timing = timing
        self.WG = [138, 139, 140, 141, 143, 144, 145]
        self.XG = 156; self.HALO = 146; self.G16 = 147
    def dma(self, s):
        o = []
        sr, ss = (56, s) if s < 14 else (60, s - 14)
        for p in range(7):
            g = []
            if p % 4 == 0:
                g = [f"s_add_u32 m0, s18, {SB[s%4] + p*1024}", f"s_add_u32 s20, s18, {ss*SLOT + p*1024}"]
            g.append(f"buffer_load_dwordx4 v{self.WG[p]}, s[{sr}:{sr+3}], s20 offen offset:{(p%4)*1024} lds")
            o.append(g)
        return o
    def setup(self):
        a = self.a; L = f"v{LANE}"; t = 160; wave = "s16"
        srd(a, 52, 44, SIZES['x'])
        srd(a, 56, 48, SIZES['w1'])
        srd(a, 60, 50, SIZES['w2'])
        srd(a, 64, 8, SIZES['gw'])
        a(f"v_and_b32 v{t}, 15, {L}")
        a(f"v_add_u32 v{t+2}, -2, v{t}")
        a(f"v_add_u32 v{t+3}, 14, v{t}")
        a(f"v_cmp_gt_u32 vcc, 2, v{t}")
        a(f"v_mov_b32 v{t+4}, 0x10000")
        a("s_nop 0")
        a(f"v_cndmask_b32 v{t+2}, v{t+3}, v{t+2}, vcc")
        a(f"v_cmp_gt_u32 vcc, 4, v{t}")
        a(f"s_lshl_b32 s20, {self.sblk}, 4")
        a("s_nop 0")
        a(f"v_cndmask_b32 v{self.HALO}, v{t+4}, v{t+2}, vcc")
        a(f"s_bitcmp1_b32 {wave}, 0")
        a("s_cselect_b64 vcc, -1, 0")
        a(f"v_cndmask_b32 v{t+1}, v{t}, v{self.HALO}, vcc")
        a(f"v_add_u32 v{t+1}, s20, v{t+1}")
        a("s_movk_i32 s17, 896")
        a(f"v_mul_lo_u32 v{t+1}, v{t+1}, s17")
        a(f"v_lshrrev_b32 v{self.G16}, 4, {L}")
        a(f"v_lshlrev_b32 v{self.G16}, 4, v{self.G16}")
        a(f"v_add_u32 v{self.XG}, v{t+1}, v{self.G16}")
        a(f"s_and_b32 s17, {wave}, 1")
        a(f"s_mul_i32 s21, s17, 14336")
        a(f"s_lshl_b32 s17, s17, 2")
        for p in range(7):
            a(f"v_add_u32 v{t}, {p*64}, {L}")
            a(f"v_mul_u32_u24 v{t+1}, 1171, v{t}")
            a(f"v_lshrrev_b32 v{t+1}, 16, v{t+1}")
            a(f"v_and_b32 v{t+3}, 2, v{t+1}")
            a(f"v_or_b32 v{t+3}, s17, v{t+3}")
            a(f"v_xor_b32 v{t}, {L}, v{t+3}")
            a(f"v_lshlrev_b32 v{self.WG[p]}, 4, v{t}")
        a(f"s_mul_i32 s18, {wave}, 7168")
        a(f"s_lshr_b32 s17, {wave}, 1")
        a("s_mul_i32 s22, s17, 448")
        a("s_mul_i32 s17, s17, 7168")
        a("s_add_u32 s21, s21, s17")
        g = []
        for i in range(7):
            g.append([f"s_add_u32 m0, s21, {XN + i*1024}", f"s_add_u32 s20, s22, {i*64}",
                      f"buffer_load_dwordx4 v{self.XG}, s[52:55], s20 offen lds"])
        g.append([f"s_mov_b32 m0, {GWL}", "s_nop 0", f"buffer_load_dwordx4 v{self.VL16}, s[64:67], 0 offen lds"])
        for i in range(4): a(f"v_mov_b32 v{t+i}, 0x3f803f80")
        a(f"v_add_u32 v{t+4}, {GWL + 1024}, v{self.VL16}")
        a(f"ds_write_b128 v{t+4}, {vr(t)}")
        return g
    def body(self, younger, stores, post_hooks, extra, tail_fn, qfn):
        a = self.a; L = f"v{LANE}"; wave = "s16"; sblk = self.sblk; timing = self.timing
        WRa = 100
        T = 114
        AS = 112
        ONE = 224
        XRES = 138
        a(f"v_lshrrev_b32 v{T}, 4, {L}")
        a(f"v_lshlrev_b32 v{T}, 3, v{T}")
        a(f"v_bfe_u32 v{T+1}, {L}, 2, 2")
        a(f"v_add_u32 v{T}, v{T}, v{T+1}")
        a(f"v_mul_u32_u24 v{T}, 896, v{T}")
        a(f"v_and_b32 v{T+1}, 3, {L}")
        a(f"v_lshl_add_u32 v{T}, v{T+1}, 3, v{T}")
        a(f"v_bfe_u32 v{T+1}, {L}, 3, 2")
        a(f"s_mul_i32 s17, {wave}, 7")
        for ct in range(7):
            a(f"s_add_u32 s19, s17, {ct}")
            a(f"v_xor_b32 v{T+2}, s19, v{T+1}")
            a(f"v_lshl_add_u32 v{WRa+ct}, v{T+2}, 5, v{T}")
            a(f"v_add_u32 v{WRa+7+ct}, 0x10000, v{WRa+ct}")
        a(f"v_add_u32 v{T}, {XN}, v{self.VL16}")
        a(f"v_and_b32 v{T+1}, 1, {L}")
        a(f"v_lshlrev_b32 v{T+1}, 10, v{T+1}")
        a(f"v_sub_u32 v{T+1}, v{self.G16}, v{T+1}")
        a(f"v_add_u32 v{T+1}, {GWL + 1024}, v{T+1}")
        a(f"v_mov_b32 v{T+2}, {GWL + 1024}")
        a(f"s_waitcnt vmcnt({min(63, 21 + younger)})")
        a("s_barrier")
        if timing == 1: stamp_mid(a, 3)
        def wreads(s):
            o = []
            sl = s % 4
            for ct in range(7):
                for hf in range(2):
                    r = 168 + (s & 1) * 28 + ct * 4 + hf * 2
                    o.append(f"ds_read_b64_tr_b16 a[{r}:{r+1}], v{WRa+7*(sl&1)+ct} offset:{(sl>>1)*32768 + hf*3584}")
            return o
        for x in wreads(0): a(x)
        for t in range(14):
            for x in range(2):
                a(f"ds_read_b128 {ar((t*2+x)*4)}, v{T} offset:{x*14336 + t*1024}")
        a(f"ds_read_b128 {ar(ONE)}, v{T+2}")
        for t in range(14): a(f"ds_read_b128 {ar(AS+t*4)}, v{T+1} offset:{t*64}")
        log = ["w1"] * 7 + ["w2"] * 7 + ["w3"] * 7 + ["y"] * younger
        def allowed(tags):
            last = max(i for i, x in enumerate(log) if x in tags)
            return len(log) - 1 - last
        statq = []
        for t in range(14):
            for x in range(2):
                X = ar((t * 2 + x) * 4)
                statq.append(f"v_mfma_f32_16x16x32_bf16 {vr(STT+x*4)}, {ar(AS+t*4)}, {X}, {vr(STT+x*4) if t else '0'}")
                statq.append(f"v_mfma_f32_16x16x32_bf16 {vr(GR+x*4)}, {X}, {X}, {vr(GR+x*4) if t else '0'}")
        def gstep(s, nt, extra_groups=()):
            t = s % 14
            mf = []
            def M(d, A, B): mf.append(f"v_mfma_f32_16x16x32_bf16 {vr(d)}, {A}, {B}, {vr(d) if t else '0'}")
            for ct in range(7):
                W = ar(168 + (s & 1) * 28 + ct * 4)
                for x in range(nt): M((x * 7 + ct) * 4, W, ar((t * nt + x) * 4))
                if nt == 2: M(CS + ct * 4, W, ar(ONE))
            if s < 14:
                for _ in range(4):
                    if statq: mf.append(statq.pop(0))
            sc = Sched(mf, cap=16)
            if s + 1 < 28:
                a(f"s_waitcnt vmcnt({min(63, allowed({f'w{s+1}'}))}) lgkmcnt(0)")
                a("s_barrier")
                if s in post_hooks: post_hooks[s]()
                fl = []
                if s + 4 < 28:
                    for g in self.dma(s + 4): fl += g
                    log.extend([f"w{s+4}"] * 7)
                for g in extra.get(s, []):
                    fl += g; log.append("fl" if "load_dword " in g[-1] else "ex")
                sc.stream(wreads(s + 1), 0, max(3, len(mf) // 3))
                if fl: sc.stream(fl, 0, len(mf))
            else:
                a("s_waitcnt lgkmcnt(0)")
                a("s_barrier")
                fl = []
                for g in extra.get(s, []): fl += g
                if fl: sc.stream(fl, 0, len(mf))
            sc.emit(a)
        RX = 128
        a(f"v_and_b32 v{T}, 15, {L}")
        a(f"v_mul_u32_u24 v{RX}, 896, v{T}")
        a(f"v_lshrrev_b32 v{T+1}, 1, v{self.G16}")
        a(f"v_add_u32 v{RX}, v{RX}, v{T+1}")
        a(f"s_mul_i32 s23, {sblk}, {16*896}")
        a(f"s_mul_i32 s17, {wave}, 224")
        a("s_add_u32 s23, s23, s17")
        for s in range(14): gstep(s, 2)
        assert not statq
        if timing == 1: stamp_mid(a, 4)
        a(f"v_and_b32 v{T}, 15, {L}")
        a(f"v_lshrrev_b32 v{T+2}, 2, v{self.G16}")
        a(f"v_sub_u32 v{T+2}, v{T}, v{T+2}")
        for r in range(4):
            a(f"v_cmp_eq_u32 s[{44+2*r}:{45+2*r}], {r}, v{T+2}")
        a(f"s_lshr_b32 s17, {wave}, 1")
        a("s_add_u32 s17, s17, 1")
        a("s_sub_u32 s19, 0, s17")
        a(f"s_bitcmp1_b32 {wave}, 0")
        a("s_cselect_b32 s17, s19, s17")
        a(f"v_add_u32 v{T+9}, s17, v{T}")
        a(f"v_add_u32 v{T+10}, s17, v{self.HALO}")
        a(f"s_mul_i32 s17, {wave}, 224")
        a(f"s_add_u32 s17, s17, {XN}")
        a(f"v_lshrrev_b32 v{T+3}, 1, v{self.G16}")
        a(f"v_add_u32 v{T+3}, s17, v{T+3}")
        a(f"v_mov_b32 v{T+5}, {HP}")
        D = 130; NM = lambda x: 148 + 2 * x; RS = lambda x: 152 + 2 * x
        for x in range(2):
            a(f"v_cndmask_b32 v{D+x}, 0, v{GR+x*4}, s[44:45]")
            for r in range(1, 4):
                a(f"v_cndmask_b32 v{D+x}, v{D+x}, v{GR+x*4+r}, s[{44+2*r}:{45+2*r}]")
        xlane_reduce(a, "v_add_f32", [D, D + 1], D + 2)
        for x in range(2):
            a(f"v_mul_f32 v{NM(x)}, {f2u(-1/448)}, v{STT+x*4}")
            a(f"v_mov_b32 v{RS(x)}, {f2u(1e-5)}")
            a(f"v_fmac_f32 v{RS(x)}, {f2u(1/448)}, v{D+x}")
            a(f"v_fma_f32 v{RS(x)}, -v{NM(x)}, v{NM(x)}, v{RS(x)}")
            a(f"v_max_f32 v{RS(x)}, {f2u(1e-5)}, v{RS(x)}")
        for x in range(2):
            a(f"v_rsq_f32 v{RS(x)}, v{RS(x)}")
        GG = T + 6
        a(f"v_mul_f32 v{GG}, {f2u(-math.log2(math.e))}, v{STT+1}")
        a(f"v_exp_f32 v{GG}, v{GG}")
        a(f"s_mov_b32 s24, {f2u(GC0)}")
        a("s_mov_b32 s25, s24")
        C1 = 130; ON = 132
        a(f"v_mov_b32 v{C1}, {f2u(GC1)}")
        a(f"v_mov_b32 v{ON}, 1.0")
        a(f"v_add_f32 v{GG}, 1.0, v{GG}")
        a(f"v_rcp_f32 v{GG}, v{GG}")
        XR_ = 84
        body = []
        for x in range(2):
            regs = [x * 28 + 2 * i for i in range(14)]
            for i, r in enumerate(regs): body.append(pk("fma", r, CS + 2 * i, NM(x), r, bc=(1,)))
        for x in range(2):
            regs = [x * 28 + 2 * i for i in range(14)]
            for i, r in enumerate(regs): body.append(pk("mul", r, r, RS(x), bc=(1,)))
            body += gelu_pk(regs, CS, "s[24:25]", C1, ON)
            for ct in range(7):
                r = x * 28 + ct * 4
                body.append(f"v_cvt_pk_bf16_f32 v{CS+2*ct}, v{r}, v{r+1}")
                body.append(f"v_cvt_pk_bf16_f32 v{CS+1+2*ct}, v{r+2}, v{r+3}")
            w = [f"v_cmp_gt_u32 vcc, 16, v{T+9+x}", f"v_mad_u32_u24 v{T+4}, v{T+9+x}, v{T+5}, v{T+3}",
                 "s_and_saveexec_b64 s[26:27], vcc"]
            for ct in range(7):
                w.append(f"ds_write_b64 v{T+4}, v[{CS+2*ct}:{CS+1+2*ct}] offset:{ct*32}")
            w.append("s_mov_b64 exec, s[26:27]")
            body.append("\n".join(w))
        res = [[f"buffer_load_dwordx2 v[{XR_+2*ct}:{XR_+2*ct+1}], v{RX}, s[52:55], s23 offen offset:{ct*32}"] for ct in range(7)]
        log.extend(["y"] * len(stores) + ["res"] * 7)
        for x in mix(body, list(stores) + res): a(x)
        a(f"v_mul_u32_u24 v{T+7}, {HP}, v{T}")
        a(f"v_add_u32 v{T+8}, v{T+7}, v{self.G16}")
        a(f"v_add_u32 v{T+8}, {XN}, v{T+8}")
        a("s_waitcnt lgkmcnt(0)")
        a("s_barrier")
        for t in range(14):
            a(f"ds_read_b128 {ar(t*4)}, v{T+8} offset:{t*64}")
        if timing == 1: stamp_mid(a, 5)
        for s in range(14, 28):
            if s == 24:
                a(f"s_waitcnt vmcnt({allowed({'fl'})})")
                extra = dict(extra); ex, tail_groups = tail_fn(); extra.update(ex)
            gstep(s, 1)
        if timing == 1: stamp_mid(a, 6)
        e = []
        for i in range(14):
            e.append(f"v_lshlrev_b32 v{28+2*i}, 16, v{XR_+i}")
            e.append(f"v_and_b32 v{29+2*i}, 0xffff0000, v{XR_+i}")
        for i in range(14): e.append(pk("add", 2 * i, 2 * i, 28 + 2 * i))
        R = 56
        for i in range(14):
            r = 2 * i
            e.append(pk("mul", R + 2, r, r) if i == 0 else pk("fma", R + 2, r, r, R + 2))
            if i == 1: e.append(pk("add", R, r - 2, r))
            elif i > 1: e.append(pk("add", R, R, r))
        e.append(f"v_add_f32 v{R+4}, v{R}, v{R+1}")
        e.append(f"v_add_f32 v{R+5}, v{R+2}, v{R+3}")
        half = len(tail_groups)
        for g in tail_groups:
            for x in g: a(x)
        for x in e: a(x)
        xlane_reduce(a, "v_add_f32", [R + 4, R + 5], R)
        a(f"v_lshlrev_b32 v{T+2}, 3, v{T}")
        a(f"v_add_u32 v{T+2}, {ST}, v{T+2}")
        a(f"s_lshl_b32 s17, {wave}, 7")
        a(f"v_add_u32 v{T+4}, s17, v{T+2}")
        a(f"ds_write_b64 v{T+4}, v[{R+4}:{R+5}]")
        a(f"v_sub_f32 v{R+6}, 1.0, v{GG}")
        for x in mix([pk("mul", 28 + 2 * i, 2 * i, R + 6, bc=(1,)) for i in range(14)], tail_groups[half:]): a(x)
        a("s_waitcnt lgkmcnt(0)")
        a("s_barrier")
        for w in range(4):
            a(f"ds_read_b64 v[{R+8+2*w}:{R+9+2*w}], v{T+2} offset:{w*128}")
        a(f"s_mul_i32 s19, {sblk}, {28*1024}")
        a(f"s_mul_i32 s17, {wave}, 7168")
        a("s_add_u32 s19, s19, s17")
        a(f"s_add_u32 s19, s19, {WS_X1}")
        a("s_add_u32 s17, s19, 4096")
        st = [[f"buffer_store_dwordx4 {vr(28+ct*4)}, v{self.VL16}, s[28:31], {'s19' if ct < 4 else 's17'} offen offset:{(ct%4)*1024} sc1"] for ct in range(7)]
        e = ["s_waitcnt lgkmcnt(0)", pk("add", R + 8, R + 8, R + 10), pk("add", R + 12, R + 12, R + 14), pk("add", R + 8, R + 8, R + 12),
             f"v_mul_f32 v{R}, {f2u(-1/448)}, v{R+8}", f"v_mov_b32 v{R+2}, {f2u(1e-5)}", f"v_fmac_f32 v{R+2}, {f2u(1/448)}, v{R+9}",
             f"v_fma_f32 v{R+2}, -v{R}, v{R}, v{R+2}", f"v_max_f32 v{R+2}, {f2u(1e-5)}, v{R+2}", f"v_rsq_f32 v{R+2}, v{R+2}"]
        for i in range(14): e.append(pk("add", 2 * i, 2 * i, R, bc=(1,)))
        for i in range(14): e.append(pk("mul", 2 * i, 2 * i, R + 2, bc=(1,)))
        e.append(f"v_add_u32 v{T+4}, v{T+7}, v{T+3}")
        e.append(f"v_subrev_u32 v{T+4}, {XN - STG}, v{T+4}")
        for ct in range(7):
            e.append(f"v_cvt_pk_bf16_f32 v{XR_+2*ct}, v{4*ct}, v{4*ct+1}")
            e.append(f"v_cvt_pk_bf16_f32 v{XR_+2*ct+1}, v{4*ct+2}, v{4*ct+3}")
            e.append(f"ds_write_b64 v{T+4}, v[{XR_+2*ct}:{XR_+2*ct+1}] offset:{ct*32}")
        for x in mix(e, qfn() + st): a(x)
        a(f"v_lshlrev_b32 v{T+2}, 2, v{T}")
        a(f"s_lshl_b32 s17, {sblk}, 6")
        a(f"s_add_u32 s17, s17, {WS_G}")
        a(f"buffer_store_dword v{GG}, v{T+2}, s[28:31], s17 offen sc1")
        a(f"v_lshrrev_b32 v{T+4}, 1, v{self.G16}")
        a(f"v_add_u32 v{T+4}, v{T+4}, v{T+7}")
        a(f"s_lshl_b32 s17, {wave}, 6")
        a(f"s_add_u32 s17, s17, {STG}")
        a(f"v_add_u32 v{T+4}, s17, v{T+4}")
        a(f"s_lshl_b32 s19, {sblk}, 14")
        a(f"s_lshl_b32 s17, {wave}, 10")
        a("s_add_u32 s19, s19, s17")
        a(f"s_add_u32 s19, s19, {WS_XN}")
        a("s_waitcnt lgkmcnt(0)")
        a("s_barrier")
        for q in range(4):
            a(f"ds_read_b64 v[{4*q}:{4*q+1}], v{T+4} offset:{q*256}")
            a(f"ds_read_b64 v[{4*q+2}:{4*q+3}], v{T+4} offset:{q*256+32}")
        for q in range(4):
            a(f"s_waitcnt lgkmcnt({6-2*q})")
            a(f"buffer_store_dwordx4 {vr(4*q)}, v{self.VL16}, s[28:31], s19 offen sc1")
            if q < 3: a("s_add_u32 s19, s19, 4096")
        if timing == 1: stamp_mid(a, 7)
```

```python
from m_common import *

XR = 128; WR = 130; VL16 = 142; T = 143; RT = 148; PK = 156
DA = dict(xg=138, wg=139, xs=20, ws=24, sx="s32", sw="s33")
DB = dict(xg=140, wg=141, xs=44, ws=48, sx="s52", sw="s53")

STFL = 'sc1'
def spread(a, mfmas, fillers, start=0, end=None):
    n = len(mfmas)
    if end is None: end = n
    f = list(fillers); g = end - start; k = 0
    for i, m in enumerate(mfmas):
        a(m)
        if start <= i < end:
            tgt = ((i - start + 1) * len(f) + g - 1) // g
            while k < tgt:
                a(f[k]); k += 1
    while k < len(f):
        a(f[k]); k += 1
def merge(l1, l2):
    out = []; i = j = 0; n1, n2 = len(l1), len(l2)
    while i < n1 or j < n2:
        if j >= n2 or (i < n1 and i * n2 <= j * n1):
            out.append(l1[i]); i += 1
        else:
            out.append(l2[j]); j += 1
    return out

def acc(i): return f"v[{4*i}:{4*i+3}]" if i < 32 else f"a[{4*(i-32)}:{4*(i-32)+3}]"
def xf(s, i): return 128 + s * 64 + i * 4
def wf(s, i): return 128 + s * 64 + 32 + i * 4

def setup_lds(a):
    L = f"v{LANE}"; t0, t1, t2 = T, T + 1, T + 2
    a(f"v_lshlrev_b32 v{VL16}, 4, {L}")
    a("s_and_b32 s17, s16, 1")
    a("s_lshl_b32 s17, s17, 14")
    a(f"v_and_b32 v{t0}, 15, {L}")
    a(f"v_lshrrev_b32 v{t1}, 1, v{t0}")
    a(f"v_lshrrev_b32 v{t2}, 4, {L}")
    a(f"v_xor_b32 v{t1}, v{t1}, v{t2}")
    a(f"v_lshlrev_b32 v{t0}, 7, v{t0}")
    a(f"v_add_u32 v{t0}, s17, v{t0}")
    for ks in range(2):
        a(f"v_xor_b32 v{t2}, {4*ks}, v{t1}")
        a(f"v_lshl_add_u32 v{XR+ks}, v{t2}, 4, v{t0}")
    a(f"v_lshrrev_b32 v{t0}, 4, {L}")
    a(f"v_lshlrev_b32 v{t0}, 3, v{t0}")
    a(f"v_bfe_u32 v{t1}, {L}, 2, 2")
    a(f"v_add_u32 v{t0}, v{t0}, v{t1}")
    a(f"v_lshlrev_b32 v{t0}, 9, v{t0}")
    a(f"v_and_b32 v{t2}, 3, {L}")
    a(f"v_lshl_add_u32 v{t0}, v{t2}, 3, v{t0}")
    a(f"v_add_u32 v{t0}, 0x10000, v{t0}")
    a(f"v_bfe_u32 v{t1}, {L}, 2, 3")
    a("s_lshr_b32 s17, s16, 1")
    a("s_lshl_b32 s17, s17, 3")
    for i in range(8):
        a(f"s_add_u32 s18, s17, {i}")
        a(f"v_xor_b32 v{t2}, s18, v{t1}")
        a(f"v_lshl_add_u32 v{WR+i}, v{t2}, 5, v{t0}")

def setup_gl(a, d):
    L = f"v{LANE}"; t0, t1, t2 = T, T + 1, T + 2
    a(f"v_lshrrev_b32 v{t0}, 3, {L}")
    a("s_lshl_b32 s17, s16, 3")
    a(f"v_add_u32 v{t0}, s17, v{t0}")
    a(f"v_bfe_u32 v{t1}, v{t0}, 1, 3")
    a(f"v_and_b32 v{t2}, 7, {L}")
    a(f"v_xor_b32 v{t1}, v{t1}, v{t2}")
    a(f"v_lshlrev_b32 v{t1}, 4, v{t1}")
    a(f"v_mul_u32_u24 v{t0}, {d['xp']}, v{t0}")
    a(f"v_add_u32 v{d['xg']}, v{t0}, v{t1}")
    a("s_and_b32 s17, s16, 1")
    a("s_lshr_b32 s18, s16, 1")
    a("s_lshl_b32 s18, s18, 2")
    a("s_add_u32 s17, s17, s18")
    a("s_lshl_b32 s17, s17, 1")
    a(f"v_lshrrev_b32 v{t0}, 5, {L}")
    a(f"v_add_u32 v{t0}, s17, v{t0}")
    a(f"v_and_b32 v{t1}, 3, v{t0}")
    a(f"v_bfe_u32 v{t2}, v{t0}, 3, 1")
    a(f"v_lshl_add_u32 v{t1}, v{t2}, 2, v{t1}")
    a(f"v_lshlrev_b32 v{t1}, 1, v{t1}")
    a(f"v_and_b32 v{t2}, 31, {L}")
    a(f"v_xor_b32 v{t1}, v{t1}, v{t2}")
    a(f"v_lshlrev_b32 v{t1}, 4, v{t1}")
    a(f"v_mul_u32_u24 v{t0}, {d['wp']}, v{t0}")
    a(f"v_add_u32 v{d['wg']}, v{t0}, v{t1}")
    a("s_lshl_b32 s34, s16, 10")
    a("s_lshl_b32 s35, s17, 9")
    a("s_add_u32 s35, s35, 0x10000")

def dma(stage, d):
    out = []
    xfl = d.get("xfl", "")
    for j in range(8):
        sx, jj = (d['sx'], j)
        if 'sx2' in d: sx, jj = (d['sx2'] if j & 2 else d['sx']), (j & 1) + 2 * (j >> 2)
        out += [f"s_add_u32 m0, s34, {stage*32768 + j*4096}", f"s_add_u32 s36, {sx}, {jj*32*d['xp']}",
                f"buffer_load_dwordx4 v{d['xg']}, s[{d['xs']}:{d['xs']+3}], s36 offen {xfl}lds"]
        pi = 2 * (j & 1) + 8 * (j >> 1)
        out += [f"s_add_u32 m0, s35, {stage*32768 + pi*1024}", f"s_add_u32 s37, {d['sw']}, {pi*2*d['wp']}",
                f"buffer_load_dwordx4 v{d['wg']}, s[{d['ws']}:{d['ws']+3}], s37 offen lds"]
    out += [f"s_add_u32 {d['sx']}, {d['sx']}, 128", f"s_add_u32 {d['sw']}, {d['sw']}, {64*d['wp']}"]
    if 'sx2' in d: out.append(f"s_add_u32 {d['sx2']}, {d['sx2']}, 128")
    return out

def reads(stage, ks, s):
    xr = [f"ds_read_b128 a[{xf(s,i)}:{xf(s,i)+3}], v{XR+ks} offset:{stage*32768 + i*2048}" for i in range(8)]
    wr = []
    for i in range(8):
        for hf in range(2):
            r = wf(s, i) + 2 * hf
            wr.append(f"ds_read_b64_tr_b16 a[{r}:{r+1}], v{WR+i} offset:{stage*32768 + ks*16384 + hf*2048}")
    return xr[:1] + wr + xr[1:]

def mfma1(s, isV, i, first):
    x, w = i // 8, i % 8
    X = f"a[{xf(s,x)}:{xf(s,x)+3}]"; W = f"a[{wf(s,w)}:{wf(s,w)+3}]"
    A, B = (X, W) if isV else (W, X)
    return f"v_mfma_f32_16x16x32_bf16 {acc(i)}, {A}, {B}, {'0' if first else acc(i)}"
def mfmas(s, isV, first=False): return [mfma1(s, isV, i, first) for i in range(64)]

def pairs(isV, xstride=8192):
    p = []
    if not isV:
        for x in range(8):
            for t in range(4): p.append((x * 8 + 2 * t, x * 8 + 2 * t + 1, x * xstride + t * 1024, x))
    else:
        for u in range(4):
            for w in range(8): p.append((2 * u * 8 + w, (2 * u + 1) * 8 + w, u * 16384 + w * 1024, 0))
    return p

def pack_ops(i0, i1, dst, scale=None, rt=RT, plain=False):
    o = []; src = []
    for q, i in enumerate((i0, i1)):
        if i < 32: src += [4 * i + p for p in range(4)]
        else:
            for p in range(4): o.append(f"v_accvgpr_read_b32 v{rt+4*q+p}, a{4*(i-32)+p}")
            src += [rt + 4 * q + p for p in range(4)]
    if scale:
        for p in range(4):
            if plain:
                for h in range(2): o.append(f"v_mul_f32 v{rt+2*p+h}, s54, v{src[2*p+h]}")
            else: o.append(f"v_pk_mul_f32 v[{rt+2*p}:{rt+2*p+1}], v[{src[2*p]}:{src[2*p]+1}], {scale}")
        src = [rt + p for p in range(8)]
    for p in range(4):
        o.append(f"v_cvt_pk_bf16_f32 v{dst+p}, v{src[2*p]}, v{src[2*p+1]}")
    return o
def store_ops(reg, off, sbase):
    return [f"s_add_u32 s40, {sbase}, {off}", f"buffer_store_dwordx4 {vr(reg)}, v{VL16}, s[28:31], s40 offen {STFL}"]
def store_n(reg, n, tmp="s40"):
    o = []
    if n % 4 == 0: o.append(f"s_add_u32 {tmp}, {'s19' if n & 4 else 's39'}, {(n >> 3) * 16384}")
    o.append(f"buffer_store_dwordx4 {vr(reg)}, v{VL16}, s[28:31], {tmp} offen offset:{(n & 3) * 1024} {STFL}")
    return o
def pk_slot(n): return PK + 4 * ((n - 8) if n >= 8 else (16 + n))

def kstep(a, stage, isV, d=None, first=False, last=False, seam=None, st=None, nvm=0, post=None, st1=None, packq=None, after=None):
    a("s_waitcnt lgkmcnt(0)")
    f0 = reads(stage, 1, 1)
    if seam:
        pv, scale, sbase = seam
        for n, (i0, i1, off, _) in enumerate(pairs(pv)):
            for x in pack_ops(i0, i1, pk_slot(n), scale): a(x)
            a(mfma1(0, isV, i0, True))
            if n < 24: a(f0[n])
            a(mfma1(0, isV, i1, True))
            if n < 8:
                for x in store_n(pk_slot(n), n): a(x)
        nvm += 8
        for x in (st or []): a(x)
    elif st:
        spread(a, mfmas(0, isV, first), merge(f0, st), 0, 56)
    else:
        spread(a, mfmas(0, isV, first), f0, 0, 32)
    if last:
        a("s_waitcnt lgkmcnt(0)" + (f" vmcnt({nvm})" if post else ""))
        a("s_barrier")
        if post: post()
        pr = pairs(isV); LAG = 8
        head = list(st1()) if st1 else []
        per = (len(head) + 2 * LAG - 1) // (2 * LAG)
        for n in range(32 + LAG):
            if n < 32:
                for h in range(2):
                    a(mfma1(1, isV, pr[n][h], False))
                    for x in head[:per]: a(x)
                    head = head[per:]
            if n >= LAG:
                m = n - LAG
                if packq:
                    for x in pack_ops(pr[m][0], pr[m][1], 4 * m, packq, plain=(n < 32)) + after(m): a(x)
                else:
                    for x in pack_ops(pr[m][0], pr[m][1], 4 * m) + store_n(4 * m, m, "s36"): a(x)
    else:
        a(f"s_waitcnt lgkmcnt(0) vmcnt({nvm})")
        a("s_barrier")
        if post: post()
        f1 = reads(stage ^ 1, 0, 0)
        if d: spread(a, mfmas(1, isV), merge(f1, dma(stage, d)), 0, 60)
        elif st1: spread(a, mfmas(1, isV), merge(f1, st1()), 0, 60)
        else: spread(a, mfmas(1, isV), f1, 0, 32)

def deferred(prevIsV, sbase, part, cnt=8, xstride=8192):
    o = []
    for n in range(8 + cnt * part, 8 + cnt * (part + 1)):
        o += store_n(pk_slot(n), n, "s57")
    return o

def steps(a, t0, t1, isV, d, st=None, nvm=0):
    n = t1 - t0
    if n >= 4:
        loop = a.label("gl")
        a(f"s_mov_b32 s38, {n // 2}")
        a(f"{loop}:")
        kstep(a, t0 & 1, isV, d, st=st, nvm=nvm)
        kstep(a, (t0 + 1) & 1, isV, d, st=st, nvm=nvm)
        a("s_sub_u32 s38, s38, 1")
        a("s_cmp_lg_u32 s38, 0")
        a(f"s_cbranch_scc1 {loop}")
        t0 += (n // 2) * 2
    while t0 < t1:
        kstep(a, t0 & 1, isV, d, st=st, nvm=nvm); t0 += 1

def prologue_dma(a, d):
    for g in dma(0, d): a(g)
    for g in dma(1, d): a(g)
def prologue_wait(a, younger=0):
    a(f"s_waitcnt vmcnt({16 + younger})")
    a("s_barrier")
    for r in reads(0, 0, 0): a(r)

def epilogue(a, isV, sbase, xstride=8192, gelu=None):
    a("s_nop 7")
    for n, (i0, i1, off, x) in enumerate(pairs(isV, xstride)):
        dst = PK + 4 * (n % 4)
        if gelu is None:
            for o in pack_ops(i0, i1, dst): a(o)
        else:
            src = []
            for q, i in enumerate((i0, i1)):
                if i < 32: src += [4 * i + p for p in range(4)]
                else:
                    for p in range(4): a(f"v_accvgpr_read_b32 v{RT+4*q+p}, a{4*(i-32)+p}")
                    src += [RT + 4 * q + p for p in range(4)]
            for o in gelu_ops(src, PK + 16, "s41", f"v{PK+24}", post=gelu + x): a(o)
            for p in range(4):
                a(f"v_cvt_pk_bf16_f32 v{dst+p}, v{src[2*p]}, v{src[2*p+1]}")
        for o in store_ops(dst, off, sbase): a(o)
```

```python
from m_common import *
from m_b12 import pk, gelu_pk, mix

WF = 64
VL16 = 206
WRD = 224
WG = 240
XV = 222
T = 242
XB = 128
WS_EX = 110 << 20
NZ = 60
TOUCH = False
def slot(z): return (8 + z) % 16

class VLog:
    def __init__(self): self.l = []
    def add(self, tag, n=1): self.l += [tag] * n
    def allowed(self, tags):
        idx = [i for i, x in enumerate(self.l) if x in tags]
        if not idx: return 63
        return min(63, len(self.l) - 1 - max(idx))

def setup_g(a, pitch, dst, xpitch):
    L = f"v{LANE}"
    a(f"v_lshrrev_b32 v{T}, 4, {L}")
    a("s_lshl_b32 s17, s16, 2")
    a(f"v_add_u32 v{T}, s17, v{T}")
    a(f"v_and_b32 v{T+1}, 7, v{T}")
    a(f"v_lshlrev_b32 v{T+1}, 1, v{T+1}")
    a(f"v_and_b32 v{T+2}, 15, {L}")
    a(f"v_xor_b32 v{T+1}, v{T+1}, v{T+2}")
    a(f"v_lshlrev_b32 v{T+1}, 4, v{T+1}")
    a(f"v_mul_u32_u24 v{T+2}, {pitch}, v{T}")
    a(f"v_add_u32 v{dst}, v{T+2}, v{T+1}")
def setup_r(a):
    L = f"v{LANE}"
    a(f"v_lshrrev_b32 v{T}, 4, {L}")
    a(f"v_lshlrev_b32 v{T}, 11, v{T}")
    a(f"v_bfe_u32 v{T+1}, {L}, 2, 2")
    a(f"v_lshl_add_u32 v{T}, v{T+1}, 8, v{T}")
    a(f"v_and_b32 v{T+2}, 3, {L}")
    a(f"v_lshl_add_u32 v{T}, v{T+2}, 3, v{T}")
    a(f"v_bfe_u32 v{T+1}, {L}, 2, 3")
    for ct in range(8):
        a(f"v_xor_b32 v{T+2}, {ct}, v{T+1}")
        a(f"v_lshl_add_u32 v{WRD+ct}, v{T+2}, 5, v{T}")
        a(f"v_add_u32 v{WRD+8+ct}, 0x10000, v{WRD+ct}")

WG2 = 208
def wload(z):
    if z < 14: wg, srdn, sb, row, p = WG, 20, "s32", 32 * z, 3584
    elif z < 46: wg, srdn, sb, row, p = WG2, 24, "s40", 32 * (z - 14), 896
    else: wg, srdn, sb, row, p = WG2, 48, "s41", 32 * (z - 46), 896
    return [[f"s_add_u32 m0, s34, {slot(z)*8192}", f"s_add_u32 s37, {sb}, {row*p}",
             f"buffer_load_dwordx4 v{wg}, s[{srdn}:{srdn+3}], s37 offen lds"],
            [f"buffer_load_dwordx4 v{wg+1}, s[{srdn}:{srdn+3}], s37 offen offset:1024 lds"]]
def xload(z):
    if z < 14: sb, off, v2 = "s33", z * 1024, XV
    elif z < 46: sb, off, v2 = "s43", (z - 14) * 1024, 207
    else: sb, off, v2 = "s47", (z - 46) * 1024, 207
    r = XB + (z % 16) * 8
    return [[f"s_add_u32 s38, {sb}, {off}", f"buffer_load_dwordx4 {ar(r)}, v{VL16}, s[28:31], s38 offen sc1"],
            [f"buffer_load_dwordx4 {ar(r+4)}, v{v2}, s[28:31], s38 offen sc1"]]
def wreads(z):
    o = []; sl = slot(z)
    for ct in range(8):
        for hf in range(2):
            r = WF + (z & 1) * 32 + ct * 4 + hf * 2
            o.append(f"ds_read_b64_tr_b16 v[{r}:{r+1}], v{WRD + 8*(sl>>3) + ct} offset:{(sl&7)*8192 + hf*1024}")
    return o
def mfmas(z, first):
    o = []
    for ct in range(8):
        for x in range(2):
            d = vr((x * 8 + ct) * 4)
            o.append(f"v_mfma_f32_16x16x32_bf16 {d}, {vr(WF+(z&1)*32+ct*4)}, {ar(XB+(z%16)*8+x*4)}, {'0' if first else d}")
    return o
flat = lambda gs: [x for g in gs for x in g]

class Tail:
    def __init__(self, a, timing):
        self.a = a; self.timing = timing; self.log = VLog(); self.nw = 0; self.nx = 0
    def take(self, nw, nx):
        g = []
        for i in range(max(nw, nx)):
            if i < nw and self.nw < NZ: g += wload(self.nw); self.log.add(f"w{self.nw}", 2); self.nw += 1
            if i < nx and self.nx < NZ: g += xload(self.nx); self.log.add(f"x{self.nx}", 2); self.nx += 1
        return g
    def pre_b3(self):
        a = self.a
        a("s_lshr_b32 s4, s12, 1")
        a("s_lshl_b32 s4, s4, 2")
        a("s_and_b32 s17, s42, 3")
        a("s_add_u32 s4, s4, s17")
        a("s_and_b32 s10, s12, 1")
        a("s_mul_i32 s10, s10, 7")
        a("s_lshr_b32 s17, s42, 2")
        a("s_add_u32 s10, s10, s17")
        setup_g(a, 3584, WG, 16384)
        a(f"v_add_u32 v{WG+1}, {16*3584 - 1024}, v{WG}")
        a(f"v_add_u32 v{XV}, 16384, v{VL16}")
        srd(a, 20, 68, SIZES['w3'])
        a("s_lshl_b32 s34, s16, 11")
        a("s_lshl_b32 s32, s10, 8")
        a("s_lshl_b32 s33, s4, 2")
        a("s_add_u32 s33, s33, s16")
        a("s_lshl_b32 s17, s33, 7")
        a("s_lshl_b32 s33, s33, 15")
        a(f"s_add_u32 s33, s33, {WS_XN}")
        a(f"v_and_b32 v{T}, 15, v{LANE}")
        a(f"v_lshlrev_b32 v{T}, 2, v{T}")
        a(f"s_add_u32 s17, s17, {WS_G}")
        a(f"buffer_load_dword v{T+8}, v{T}, s[28:31], s17 offen sc1")
        a(f"buffer_load_dword v{T+9}, v{T}, s[28:31], s17 offen offset:64 sc1")
    def pre(self):
        a = self.a
        a("s_load_dwordx2 s[58:59], s[0:1], 80")
        a("s_load_dwordx2 s[60:61], s[0:1], 40")
        a("s_load_dwordx2 s[62:63], s[0:1], 96")
        setup_r(a)
        a("s_lshr_b32 s44, s12, 2")
        a("s_lshl_b32 s44, s44, 3")
        a("s_and_b32 s17, s42, 7")
        a("s_add_u32 s44, s44, s17")
        a("s_lshr_b32 s45, s42, 3")
        a("s_and_b32 s46, s12, 3")
        setup_g(a, 896, WG2, CF_PITCH)
        a(f"v_lshrrev_b32 v{T+1}, 7, v{T+1}")
        a("s_cmp_eq_u32 s45, 3\ns_cselect_b32 s19, 1, 0")
        a(f"v_and_b32 v{T+1}, s19, v{T+1}")
        a(f"v_lshlrev_b32 v{T+1}, 30, v{T+1}")
        a(f"v_add_u32 v{WG2}, v{WG2}, v{T+1}")
        a(f"v_add_u32 v{WG2+1}, {16*896 - 1024}, v{WG2}")
        a(f"v_add_u32 v207, {CF_PITCH}, v{VL16}")
        a("s_lshl_b32 s17, s45, 8")
        a(f"s_mul_i32 s40, s46, {1024*896}")
        a("s_add_u32 s40, s40, s17")
        a(f"s_mul_i32 s41, s46, {448*896}")
        a("s_add_u32 s41, s41, s17")
        a("s_lshl_b32 s43, s44, 2")
        a("s_add_u32 s43, s43, s16")
        a(f"s_mul_i32 s43, s43, {2*CF_PITCH}")
        a(f"s_add_u32 s43, s43, {WS_C}")
        a(f"s_mul_i32 s17, s46, {14*1024}")
        a("s_add_u32 s47, s43, s17")
        a(f"s_add_u32 s47, s47, {128*1024}")
        a("s_lshl_b32 s17, s46, 15")
        a("s_add_u32 s43, s43, s17")
        self.c_addr(T + 10)
        a("s_waitcnt lgkmcnt(0)")
        srd(a, 24, 60, SIZES['wo'])
        srd(a, 48, 58, SIZES['w4'])
        srd(a, 52, 62, SIZES['out'])
    def estep(self, mf, nxt_reads, fl):
        sc = Sched(mf, cap=8)
        for i, r in enumerate(nxt_reads): sc.fix(i, r)
        sc.before(8, f"s_waitcnt lgkmcnt({8 if nxt_reads else 0})")
        if fl: sc.stream(fl, 0, 16)
        sc.emit(self.a)
    def c_addr(self, FO):
        a = self.a; L = f"v{LANE}"
        a("s_sub_u32 s17, 31, s44")
        a("s_cmp_lt_u32 s44, 8\ns_cselect_b32 s17, s44, s17")
        a("s_lshl_b32 s17, s17, 2")
        a("s_add_u32 s17, s17, s46")
        a("s_lshl_b32 s17, s17, 1")
        a(f"v_and_b32 v{FO}, 1, {L}")
        a(f"v_lshlrev_b32 v{FO}, 6, v{FO}")
        a(f"v_bfe_u32 v{T}, {L}, 1, 1")
        a(f"v_add3_u32 v{FO}, v{FO}, v{T}, s17")
        wg_to_off(a, FO)
    def touch(self, what):
        a = self.a
        a("s_lshl_b32 s17, s45, 2")
        a("s_add_u32 s17, s17, s16")
        a("s_lshr_b32 s18, s17, 1")
        a("s_lshl_b32 s19, s16, 1")
        a("s_sub_u32 s18, s18, s19")
        a(f"s_mul_i32 s18, s18, {CF_PITCH}")
        a("s_and_b32 s17, s17, 1")
        a(f"s_mul_i32 s17, s17, {8192 if what == 'c' else 6144}")
        a("s_add_u32 s18, s18, s17")
        a(f"s_add_u32 s18, s18, {'s43' if what == 'c' else 's47'}")
        a(f"v_lshlrev_b32 v221, 3, v{VL16}")
        a("buffer_load_dword v223, v221, s[28:31], s18 offen sc1")
        self.log.add("t")
        if what == 'c':
            a("s_add_u32 s18, s18, 16384")
            a("buffer_load_dword v223, v221, s[28:31], s18 offen sc1")
            self.log.add("t")
    def sync(self, z, tag, stage, frm, span=2):
        a = self.a; log = self.log
        al = log.allowed({f"x{z+i}" for i in range(span)} | {f"w{z+1+i}" for i in range(span)})
        if tag not in self.done and z >= frm: al = min(al, log.allowed({tag}))
        a(f"s_waitcnt vmcnt({al}) lgkmcnt(8)")
        a("s_barrier")
        if tag not in self.done and al <= log.allowed({tag}):
            set_flag(a, stage, T); self.done.add(tag)
    def b3(self):
        a = self.a; log = self.log
        FO = T + 10
        self.done = set()
        a(f"s_waitcnt vmcnt({log.allowed({'w0'})})")
        a("s_barrier")
        if self.timing == 3: stamp_mid(a, 1)
        for x in wreads(0): a(x)
        for z in range(14):
            if self.timing == 4 and z in (0, 6, 8): stamp_mid(a, {0: 0, 6: 1, 8: 2}[z])
            if z % 2 == 0: self.sync(z, "c", ST_C, 6)
            else: a("s_waitcnt lgkmcnt(8)")
            lim = (z & ~1) + 15
            nx = min(2, 14 - self.nx)
            nw = min(2, lim + 1 - self.nw)
            fl = flat(self.take(nw, nx))
            if z == 12: fl.append(flag_load(FO + 1, FO)); log.add("fl")
            self.estep(mfmas(z, z == 0), wreads(z + 1) if z < 13 else [], fl)
        assert "c" in self.done
        self.wmark = self.nw
        if self.timing == 3: stamp_mid(a, 2)
        if self.timing == 4: stamp_mid(a, 3)
        a("s_lshl_b32 s17, s4, 2")
        a("s_add_u32 s17, s17, s16")
        a(f"s_mul_i32 s35, s17, {2*CF_PITCH}")
        a("s_lshl_b32 s18, s10, 12")
        a("s_add_u32 s35, s35, s18")
        a(f"s_add_u32 s35, s35, {WS_C + 128*1024}")
        a(f"s_add_u32 s39, s35, {CF_PITCH}")
        a(f"s_mov_b32 s64, {f2u(GC0)}")
        a("s_mov_b32 s65, s64")
        C1 = T; ON = T + 2; OG = T + 4
        a(f"v_mov_b32 v{C1}, {f2u(GC1)}")
        a(f"v_mov_b32 v{ON}, 1.0")
        a(f"v_sub_f32 v{OG}, 1.0, v{T+8}")
        a(f"v_sub_f32 v{OG+2}, 1.0, v{T+9}")
        for part in range(4):
            x = part // 2
            regs = [part * 16 + 2 * i for i in range(8)]
            body = gelu_pk(regs, 64, "s[64:65]", C1, ON, post=OG + 2 * x)
            for t2 in range(2):
                r = part * 16 + t2 * 8; d = 96 + (part * 2 + t2) * 4
                for p in range(4):
                    body.append(f"v_cvt_pk_bf16_f32 v{d+p}, v{r+2*p}, v{r+2*p+1}")
            if part == 1:
                if self.timing == 4: stamp_mid(a, 4)
                a(f"s_waitcnt vmcnt({log.allowed({'fl'})})")
                check(a, FO + 1, FO, 15, ST_C)
                if self.timing == 4: stamp_mid(a, 5)
                if TOUCH: self.touch("c")
            gs = self.take(0, 5) if part else []
            for o in mix(body, gs): a(o)
        self.xmark = self.nx
        for i in range(8):
            a(f"buffer_store_dwordx4 {vr(96+i*4)}, v{VL16}, s[28:31], {'s35' if i < 4 else 's39'} offen offset:{(i%4)*1024} sc1")
        log.add("h", 8)
        if self.timing == 3: stamp_mid(a, 3)
        if self.timing == 4: stamp_mid(a, 6)
    def nob3(self):
        a = self.a; FO = T + 10
        a("s_waitcnt vmcnt(0)")
        a("s_barrier")
        set_flag(a, ST_C, T)
        for z in range(14, self.wmark):
            for x in flat(wload(z)): a(x)
        poll(a, FO, 15, ST_C, FO + 1)
        for z in range(14, self.xmark):
            for x in flat(xload(z)): a(x)
        a("s_waitcnt vmcnt(0)")
    def final(self):
        a = self.a; log = self.log; L = f"v{LANE}"
        FO = T + 10; ND = T + 9
        a("s_lshl_b32 s17, s46, 5")
        for i in range(16):
            a(f"v_xor_b32 v{WRD+i}, s17, v{WRD+i}")
        a(f"s_waitcnt vmcnt({log.allowed({'w14'})})")
        a("s_barrier")
        if self.timing in (1, 3): stamp_mid(a, 6 if self.timing == 1 else 4)
        for x in wreads(14): a(x)
        a("s_lshr_b32 s17, s44, 2")
        a("s_lshl_b32 s17, s17, 1")
        a("s_and_b32 s18, s44, 3")
        a("s_lshl_b32 s18, s18, 3")
        a("s_add_u32 s17, s17, s18")
        a(f"v_bfe_u32 v{FO}, {L}, 1, 3")
        a(f"v_lshlrev_b32 v{FO}, 5, v{FO}")
        a(f"v_and_b32 v{T+2}, 1, {L}")
        a(f"v_add3_u32 v{FO}, v{FO}, v{T+2}, s17")
        a(f"v_mov_b32 v{ND}, {ST_H}")
        a("s_and_b32 s17, s2, 0xfc")
        a("s_mov_b64 exec, 0xf0000")
        a(f"v_and_b32 v{FO}, 3, {L}")
        a(f"v_add_u32 v{FO}, s17, v{FO}")
        a(f"v_mov_b32 v{ND}, {ST_C}")
        a("s_mov_b64 exec, -1")
        wg_to_off(a, FO)
        pre = ["s_lshl_b32 s19, s44, 2", "s_add_u32 s19, s19, s45", "s_lshl_b32 s32, s19, 17", "s_lshl_b32 s17, s16, 11",
               "s_add_u32 s32, s32, s17", f"s_add_u32 s32, s32, {WS_EX}", "s_lshl_b32 s17, s46, 13", "s_add_u32 s33, s32, s17",
               "s_lshl_b32 s17, s46, 15", "s_add_u32 s32, s32, s17",
               "s_lshl_b32 s35, s44, 2", "s_add_u32 s35, s35, s16", f"s_mul_i32 s36, s35, {2*28*1024}",
               "s_lshl_b32 s18, s45, 3", "s_add_u32 s18, s18, s46", "s_lshl_b32 s39, s18, 10", "s_add_u32 s36, s36, s39",
               f"s_add_u32 s36, s36, {WS_X1}"]
        for x in range(2):
            for h in range(2):
                pre += [f"s_add_u32 s39, s36, {x*28*1024 + h*4096}",
                        f"buffer_load_dwordx4 {vr(128+(x*2+h)*4)}, v{VL16}, s[28:31], s39 offen sc1"]
        for q in range(1, 4):
            pre += [f"s_xor_b32 s39, s46, {q}", f"s_lshl_b32 s{56+q}, s39, 15", f"s_add_u32 s{56+q}, s{56+q}, s33",
                    f"s_lshl_b32 s{60+q}, s39, 13", f"s_add_u32 s{60+q}, s{60+q}, s32"]
        pre += [f"v_and_b32 v{T}, 15, {L}", f"v_mul_u32_u24 v{T}, 896, v{T}", f"v_lshrrev_b32 v{T+1}, 4, {L}",
                f"v_lshl_add_u32 v{T}, v{T+1}, 3, v{T}", f"s_mul_i32 s17, s35, {32*896}", "s_lshl_b32 s18, s18, 5",
                "s_add_u32 s17, s17, s18", "s_add_u32 s18, s17, 128", "s_cmp_eq_u32 s45, 3\ns_cselect_b32 s18, 0x40000000, s18",
                f"v_add_u32 v{T+1}, {16*896}, v{T}"]
        for z in range(14, NZ):
            if self.timing == 5 and z in (16, 22, 23, 30, 32, 40, 48): stamp_mid(a, [16, 22, 23, 30, 32, 40, 48].index(z))
            if self.nx == 46 and "hc" not in self.done:
                a(f"s_waitcnt vmcnt({log.allowed({'fl2'})})")
                check(a, FO + 1, FO, 0xf3fff, f"v{ND}")
                if TOUCH: self.touch("h")
                self.done.add("hc")
            if self.timing == 3 and z == 16: stamp_mid(a, 5)
            if self.timing == 3 and z == 38: stamp_mid(a, 6)
            if (z - 14) % 4 == 0:
                self.sync(z, "h", ST_H, 20, 4); lastb = z
            else: a("s_waitcnt lgkmcnt(8)")
            if self.nw < NZ or self.nx < NZ:
                assert self.nx <= z + 15
                fl = flat(self.take(1 if self.nw <= lastb + 15 else 0, 1))
                if self.nx == 42 and "f2" not in self.done:
                    self.done.add("f2"); fl.append(flag_load(FO + 1, FO)); log.add("fl2")
            else:
                fl = pre[:8]; pre = pre[8:]
                log.add("pre", sum("buffer_" in x for x in fl))
            self.estep(mfmas(z, z == 14), wreads(z + 1) if z + 1 < NZ else [], fl)
        assert not pre
        if self.timing: stamp_mid(a, 7)
        a("s_nop 7")
        for q in range(1, 4):
            for x in range(2):
                d = 64 + ((q - 1) * 2 + x) * 4
                for h in range(2):
                    r = (x * 8 + q + 4 * h) * 4
                    a(f"v_cvt_pk_bf16_f32 v{d+2*h}, v{r}, v{r+1}")
                    a(f"v_cvt_pk_bf16_f32 v{d+2*h+1}, v{r+2}, v{r+3}")
                a(f"buffer_store_dwordx4 {vr(d)}, v{VL16}, s[28:31], s{56+q} offen offset:{x*1024} sc1")
        a("s_waitcnt vmcnt(6)")
        for x in range(2):
            for h in range(2):
                r = (x * 8 + 4 * h) * 4
                for p in range(2):
                    a(pk("add", r + 2 * p, r + 2 * p, 128 + (x * 2 + h) * 4 + 2 * p))
        lp = a.label("ex"); ok = a.label("exok")
        a("s_mov_b32 s67, 0x20000")
        a(f"{lp}:")
        for q in range(1, 4):
            for x in range(2):
                a(f"buffer_load_dwordx4 {vr(96+((q-1)*2+x)*4)}, v{VL16}, s[28:31], s{60+q} offen offset:{x*1024} sc1")
        a("s_waitcnt vmcnt(0)")
        a("v_max3_u32 v120, v96, v97, v98")
        for i in range(99, 119, 2):
            a(f"v_max3_u32 v120, v120, v{i}, v{i+1}")
        a("v_max_u32 v120, v120, v119")
        a("v_cmp_eq_u32 vcc, -1, v120")
        a(f"s_cbranch_vccz {ok}")
        a("s_sub_u32 s67, s67, 1")
        a("s_cmp_lg_u32 s67, 0")
        a(f"s_cbranch_scc1 {lp}")
        a(f"{ok}:")
        for q in range(1, 4):
            for x in range(2):
                d = 96 + ((q - 1) * 2 + x) * 4
                for h in range(2):
                    r = (x * 8 + 4 * h) * 4
                    for p in range(2):
                        a(f"v_lshlrev_b32 v{64+4*h+2*p}, 16, v{d+2*h+p}")
                        a(f"v_and_b32 v{65+4*h+2*p}, 0xffff0000, v{d+2*h+p}")
                for h in range(2):
                    r = (x * 8 + 4 * h) * 4
                    for p in range(2):
                        a(pk("add", r + 2 * p, r + 2 * p, 64 + 4 * h + 2 * p))
        for x in range(2):
            for h in range(2):
                r = (x * 8 + 4 * h) * 4; d = 72 + (x * 2 + h) * 2
                a(f"v_cvt_pk_bf16_f32 v{d}, v{r}, v{r+1}")
                a(f"v_cvt_pk_bf16_f32 v{d+1}, v{r+2}, v{r+3}")
                a(f"buffer_store_dwordx2 v[{d}:{d+1}], v{T+x}, s[52:55], {'s17' if h == 0 else 's18'} offen")

def poison_ops(a0, vl16, vdat, sreg):
    a = lambda x: a0(x.replace('s67', sreg))
    a("s_lshr_b32 s67, s12, 2")
    a("s_lshl_b32 s67, s67, 3")
    a("s_and_b32 s17, s42, 7")
    a("s_add_u32 s67, s67, s17")
    a("s_lshl_b32 s67, s67, 2")
    a("s_lshr_b32 s17, s42, 3")
    a("s_add_u32 s67, s67, s17")
    a("s_lshl_b32 s67, s67, 2")
    a("s_and_b32 s17, s12, 3")
    a("s_add_u32 s67, s67, s17")
    a("s_lshl_b32 s67, s67, 4")
    a("s_add_u32 s67, s67, s16")
    a("s_lshl_b32 s67, s67, 11")
    a(f"s_add_u32 s67, s67, {WS_EX}")
    for i in range(4): a(f"v_mov_b32 v{vdat+i}, -1")
    o = []
    for q in range(1, 4):
        o.append([f"s_xor_b32 s19, s17, {q}", "s_lshl_b32 s19, s19, 13", f"s_add_u32 s19, s19, {sreg}",
                  f"buffer_store_dwordx4 {vr(vdat)}, v{vl16}, s[28:31], s19 offen sc1"])
        o.append([f"buffer_store_dwordx4 {vr(vdat)}, v{vl16}, s[28:31], s19 offen offset:1024 sc1"])
    return o

def tail_sweep(a, t):
    L = f"v{LANE}"
    a("s_load_dwordx4 s[56:59], s[0:1], 72")
    a("s_load_dwordx2 s[60:61], s[0:1], 40")
    a("s_lshl_b32 s62, s42, 2")
    a("s_add_u32 s62, s62, s16")
    a(f"v_lshlrev_b32 v{t}, 7, {L}")
    a("s_lshr_b32 s63, s12, 1")
    a("s_lshl_b32 s63, s63, 2")
    a("s_and_b32 s64, s42, 3")
    a("s_add_u32 s63, s63, s64")
    a("s_lshl_b32 s63, s63, 5")
    a("s_and_b32 s64, s42, 28")
    a("s_add_u32 s63, s63, s64")
    a("s_add_u32 s63, s63, s16")
    a("s_lshl_b32 s63, s63, 12")
    a(f"s_add_u32 s63, s63, {WS_XN}")
    a(f"v_lshlrev_b32 v{t+1}, 6, {L}")
    a(f"buffer_load_dword v223, v{t+1}, s[28:31], s63 offen sc1")
    a("s_mul_i32 s63, s62, 49")
    a(f"v_add_u32 v{t+2}, s63, {L}")
    a(f"v_mul_u32_u24 v{t+1}, 18725, v{t+2}")
    a(f"v_lshrrev_b32 v{t+1}, 18, v{t+1}")
    a(f"v_mul_u32_u24 v{t+1}, 14, v{t+1}")
    a(f"v_add_u32 v{t+2}, v{t+2}, v{t+1}")
    a(f"v_lshlrev_b32 v{t+2}, 7, v{t+2}")
    a("s_and_b32 s63, s12, 1")
    a("s_mul_i32 s63, s63, 1792")
    a("s_and_b32 s64, s12, 3")
    a(f"s_mul_i32 s65, s64, {1024*896}")
    a(f"s_mul_i32 s66, s62, {56*128}")
    a("s_add_u32 s65, s65, s66")
    a(f"s_mul_i32 s64, s64, {448*896}")
    a(f"s_mul_i32 s66, s62, {25*128}")
    a("s_add_u32 s64, s64, s66")
    a(f"v_lshlrev_b32 v{t+1}, 6, {L}")
    a("s_waitcnt lgkmcnt(0)")
    srd(a, 44, 56, SIZES['w3'])
    srd(a, 48, 60, SIZES['wo'])
    srd(a, 52, 58, SIZES['w4'])
    a(f"buffer_load_dword v223, v{t+2}, s[44:47], s63 offen")
    a(f"buffer_load_dword v223, v{t}, s[48:51], s65 offen")
    a(f"buffer_load_dword v223, v{t+1}, s[52:55], s64 offen")
```

```python
from m_common import *
import m_e1 as e1, m_b12, m_attn, m_e2, sys
from m_e1 import DA, DB
from m_b12 import mix

CPF = True
EARLYPUB = True
def kv_desc(d): return dict(d, xp=2048, wp=8192)

def setup_kv(a, d):
    srd(a, d['xs'], 4, SIZES['ckv'])
    w = d['ws']
    a("s_cmp_eq_u32 s13, 0")
    a(f"s_cselect_b32 s{w}, s8, s10")
    a(f"s_cselect_b32 s{w+1}, s9, s11")
    a(f"s_and_b32 s{w+1}, s{w+1}, 0xffff")
    a(f"s_mov_b32 s{w+2}, {SIZES['wuk']}")
    a(f"s_mov_b32 s{w+3}, 0x20000")
    e1.setup_gl(a, d)
    a(f"s_lshl_b32 {d['sx']}, s14, 19")
    a(f"s_lshl_b32 {d['sw']}, s15, 9")

def kv_out_base(a):
    a("s_and_b32 s17, s16, 1")
    a("s_lshr_b32 s18, s16, 1")
    a("s_lshl_b32 s39, s15, 20")
    a("s_lshl_b32 s40, s14, 17")
    a("s_add_u32 s39, s39, s40")
    a("s_lshl_b32 s40, s17, 16")
    a("s_add_u32 s39, s39, s40")
    a("s_add_u32 s17, s13, 12")
    a("s_lshl_b32 s40, s18, s17")
    a("s_add_u32 s39, s39, s40")
    a("s_lshl_b32 s40, s13, 24")
    a("s_add_u32 s39, s39, s40")
    a("s_lshr_b32 s40, 8192, s13")
    a("s_add_u32 s19, s39, s40")

def init_done(a):
    sk = a.label("noinit")
    a("s_lshl_b32 s17, s16, 8")
    a("s_add_u32 s17, s17, s2")
    a("s_cmp_ge_u32 s17, 8")
    a(f"s_cbranch_scc1 {sk}")
    srd(a, 56, 68, 256)
    a("s_lshl_b32 s17, s2, 2")
    a(f"v_mov_b32 v{e1.T}, 1")
    a(f"v_mov_b32 v{e1.T+1}, 0")
    a("s_mov_b64 exec, 1")
    a(f"buffer_store_dword v{e1.T}, v{e1.T+1}, s[56:59], s17 offen sc1")
    a("s_mov_b64 exec, -1")
    a(f"{sk}:")

PFD = int(__import__('os').environ.get('PFD', 5))
OTHER = [('x', 44, 70), ('wq', 46, 141), ('w1', 48, 16), ('w2', 50, 16), ('w3', 52, 62), ('w4', 54, 62), ('wo', 56, 141)]
def setup_sweep(a, d):
    L = f"v{LANE}"; t = e1.T
    w0 = a.label("sw0"); w1 = a.label("sw1"); dn = a.label("swd")
    a("s_cmp_eq_u32 s16, 0")
    a(f"s_cbranch_scc1 {w0}")
    a("s_cmp_eq_u32 s16, 1")
    a(f"s_cbranch_scc1 {w1}")
    a("s_lshl_b32 s17, s2, 1")
    a("s_add_u32 s17, s17, s16")
    a("s_sub_u32 s17, s17, 2")
    start = 0
    for i, (nm, p, cnt) in enumerate(OTHER):
        if i == 0:
            a(f"s_mov_b32 s60, s{p}"); a(f"s_mov_b32 s61, s{p+1}"); a(f"s_mov_b32 s62, {SIZES[nm]}"); a("s_mov_b32 s18, 0")
        else:
            a(f"s_cmp_ge_u32 s17, {start}")
            a(f"s_cselect_b32 s60, s{p}, s60"); a(f"s_cselect_b32 s61, s{p+1}, s61")
            a(f"s_cselect_b32 s62, {SIZES[nm]}, s62"); a(f"s_cselect_b32 s18, {start}, s18")
        assert cnt * 208 * 128 >= SIZES[nm]
        start += cnt
    a("s_sub_u32 s17, s17, s18")
    a(f"s_mul_i32 s64, s17, {208*128}")
    a("s_movk_i32 s65, 2048")
    a(f"v_lshlrev_b32 v252, 5, {L}")
    a(f"s_branch {dn}")
    a(f"{w0}:")
    a(f"s_mov_b32 s60, s{d['xs']}"); a(f"s_mov_b32 s61, s{d['xs']+1}"); a(f"s_mov_b32 s62, {SIZES['ckv']}")
    a("s_bfe_u32 s17, s42, 0x20002")
    a("s_lshl_b32 s17, s17, 17")
    a("s_lshl_b32 s64, s14, 19")
    a("s_add_u32 s64, s64, s17")
    a("s_add_u32 s64, s64, 384")
    a("s_movk_i32 s65, 128")
    a(f"v_lshlrev_b32 v252, 11, {L}")
    a(f"s_branch {dn}")
    a(f"{w1}:")
    a(f"s_mov_b32 s60, s{d['ws']}"); a(f"s_mov_b32 s61, s{d['ws']+1}"); a(f"s_mov_b32 s62, {SIZES['wuk']}")
    a("s_lshl_b32 s64, s14, 16")
    a("s_lshl_b32 s17, s15, 9")
    a("s_add_u32 s64, s64, s17")
    a(f"s_add_u32 s64, s64, {3*64*8192}")
    a(f"s_mov_b32 s65, {64*8192}")
    a(f"v_lshrrev_b32 v252, 3, {L}")
    a("v_lshlrev_b32 v252, 13, v252")
    a(f"v_and_b32 v{t}, 7, {L}")
    a(f"v_lshl_add_u32 v252, v{t}, 6, v252")
    a(f"{dn}:")
    a("s_and_b32 s61, s61, 0xffff")
    a("s_mov_b32 s63, 0x20000")
SW = ["buffer_load_dword v253, v252, s[60:63], s64 offen", "s_add_u32 s64, s64, s65"]

def gen(label, timing=False, adj=0, tb=0, sweep=True, ta=1):
    a = Asm()
    a.begin_kernel(label)
    done = a.label("done")
    a("s_cmp_lt_u32 s2, 256")
    a("s_cbranch_scc1 go")
    a("s_endpgm")
    a("go:")
    a("s_getpc_b64 s[100:101]")
    a("s_sub_u32 s100, s100, 4")
    a("s_subb_u32 s101, s101, 0")
    a("s_load_dwordx2 s[4:5], s[0:1], 8")
    a("s_load_dwordx4 s[8:11], s[0:1], 24")
    a("s_load_dwordx2 s[6:7], s[0:1], 112")
    a("s_load_dwordx2 s[68:69], s[0:1], 104")
    a("s_load_dwordx2 s[44:45], s[0:1], 0")
    a("s_load_dwordx2 s[46:47], s[0:1], 16")
    a("s_load_dwordx4 s[48:51], s[0:1], 56")
    a("s_load_dwordx4 s[52:55], s[0:1], 72")
    a("s_load_dwordx2 s[56:57], s[0:1], 40")
    if timing: stamp_begin(a)
    a("s_and_b32 s12, s2, 7")
    a("s_lshr_b32 s42, s2, 3")
    a("v_lshrrev_b32 v1, 6, v0")
    a(f"v_and_b32 v{LANE}, 63, v0")
    a("v_readfirstlane_b32 s16, v1")
    if CPF:
        code_pf_addr(a, 2)
        a(code_pf(3, 2))
    a("s_bfe_u32 s14, s42, 0x10002")
    a("s_lshl_b32 s15, s12, 1")
    a("s_add_u32 s15, s15, s14")
    a("s_lshr_b32 s14, s42, 4")
    a("s_xor_b32 s14, s14, 1")
    a("s_lshl_b32 s14, s14, 2")
    a("s_and_b32 s13, s42, 3")
    a("s_add_u32 s14, s14, s13")
    a("s_bfe_u32 s13, s42, 0x10003")
    a("s_waitcnt lgkmcnt(0)")
    dkv = kv_desc(DA)
    srd(a, 28, 6, WS_SIZE)
    sk = a.label("noclr")
    a("s_cmp_ge_u32 s2, 8")
    a(f"s_cbranch_scc1 {sk}")
    a("v_lshlrev_b32 v0, 4, v0")
    for i in range(4): a(f"v_mov_b32 v{4+i}, 0")
    a("s_lshl_b32 s17, s2, 12")
    a(f"s_add_u32 s17, s17, {WS_FLAG}")
    a("buffer_store_dwordx4 v[4:7], v0, s[28:31], s17 offen sc1")
    a(f"{sk}:")
    setup_kv(a, dkv)
    e1.prologue_dma(a, dkv)
    npre = 0
    if sweep:
        setup_sweep(a, dkv)
        npre = 0
    kv_out_base(a)
    a("s_mov_b32 s66, s13")
    a("s_lshl_b32 s15, s12, 1")
    a("s_add_u32 s15, s15, s13")
    a("s_and_b32 s14, s42, 7")
    a("s_lshr_b32 s13, s42, 4")
    a("s_lshl_b32 s3, s2, 7")
    a(f"s_add_u32 s3, s3, {WS_FLAG}")
    a("s_lshl_b32 s43, s12, 4")
    a("s_and_b32 s17, s42, 15")
    a("s_add_u32 s43, s43, s17")
    e1.setup_lds(a)
    lv = a.label("vpath"); att = a.label("att")
    sw = SW; nsw = 1
    def kv_head(isV):
        a(f"s_waitcnt vmcnt(16)")
        a("s_barrier")
        if timing: stamp_mid(a, 0)
        for r in e1.reads(0, 0, 0): a(r)
        e1.kstep(a, 0, isV, dkv, first=True, st=(sw * (npre + 1) if sw else None), nvm=nsw + npre, post=lambda: init_done(a))
        if tb == 9: stamp_mid(a, 3)
        e1.steps(a, 1, 13, isV, dkv, st=sw, nvm=nsw)
        if tb == 9: stamp_mid(a, 5)
        srd(a, 56, 68, 256)
        a(f"v_lshlrev_b32 v252, 2, v{LANE}")
        a("s_load_dwordx2 s[8:9], s[0:1], 88")
        code_pf_addr(a, e1.T + 3)
        e1.kstep(a, 1, isV, dkv, st=[flag_load(254, 252, 56)] + ([code_pf(e1.T + 4, e1.T + 3)] if CPF else []),
                 post=lambda: check(a, 254, 252, 0xff, 1, srdn=56))
        m_attn.entry_flags(a, 252, 253, e1.T)

        if tb == 9: stamp_mid(a, 7)
    dq = dict(DB, xp=896, wp=8192, sx2="s56")
    B = m_b12.B12(a, "s43", e1.VL16, tb)
    qrest = a.label("qrest"); b12l = a.label("b12")
    a("s_cmp_lg_u32 s66, 0")
    a(f"s_cbranch_scc1 {lv}")
    for isV in (0, 1):
        if isV: a(f"{lv}:")
        kv_head(isV)
        la = a.label("atype")
        a("s_cmp_ge_u32 s42, 16")
        a(f"s_cbranch_scc1 {la}")
        a("s_mov_b64 s[58:59], s[46:47]")
        srd(a, 44, 44, SIZES['x'])
        srd(a, 48, 58, SIZES['wq'])
        e1.setup_gl(a, dq)
        a(f"s_mul_i32 s56, s14, {128*896}")
        a(f"s_sub_u32 s52, {15*128*896}, s56")
        a("s_lshl_b32 s53, s15, 9")
        a(f"s_mov_b32 s54, {f2u(math.log2(math.e) / 16)}")
        a("s_mov_b32 s55, s54")
        e1.kstep(a, 0, isV, dq)
        e1.kstep(a, 1, isV, dq)
        if timing: stamp_mid(a, 1)
        e1.kstep(a, 0, 0, dq, seam=(isV, None, None))
        a(f"s_branch {qrest}")
        a(f"{la}:")
        a("s_mov_b32 s38, s19")
        gx = B.setup()
        a("s_and_b32 s17, s42, 15")
        a("s_lshl_b32 s17, s17, 2")
        a("s_add_u32 s17, s17, s16")
        a(f"s_mul_i32 s23, s17, {49*128}")
        a(f"v_lshlrev_b32 v157, 7, v{LANE}")
        flat = lambda gs: [x for g in gs for x in g]
        e1.kstep(a, 0, isV, st=flat(gx) + ["buffer_load_dword v254, v157, s[56:59], s23 offen"], nvm=9,
                 st1=lambda: flat(B.dma(0)) + ["buffer_load_dword v254, v157, s[60:63], s23 offen"])
        e1.kstep(a, 1, isV, last=True, st=flat(B.dma(1)), st1=lambda: flat(B.dma(2) + B.dma(3)))
        if timing: stamp_mid(a, 1)
        a(f"s_branch {b12l}")
    a(f"{qrest}:")
    if tb == 1: stamp_mid(a, 3)
    flat = lambda gs: [x for g in gs for x in g]
    for p in range(4):
        e1.kstep(a, (p + 1) & 1, 0, dq, st=e1.deferred(0, None, p, 4), nvm=4)
        if tb == 1: stamp_mid(a, 4 + p)
    rg = []
    def post21():
        check(a, 254, 252, 0xff, "v253")
        rg.extend(m_attn.setup(a, adj))
    e1.kstep(a, 1, 0, st=[flag_load(254, 252)] + e1.deferred(0, None, 2, 8), nvm=8, post=post21, st1=lambda: flat(rg[:12]))
    pre = ["s_and_b32 s17, s16, 1", "s_lshl_b32 s19, s17, 16", "s_lshr_b32 s18, s16, 1", "s_lshl_b32 s36, s18, 12",
           "s_add_u32 s19, s19, s36", f"v_add_u32 v{e1.T}, s19, v{e1.VL16}",
           "s_lshl_b32 s19, s18, 16", "s_lshl_b32 s37, s17, 14", "s_add_u32 s19, s19, s37", f"v_add_u32 v{e1.T+1}, s19, v{e1.VL16}",
           "s_lshl_b32 s37, s17, 15", "s_add_u32 s36, s36, s37", "s_lshl_b32 s37, s15, 20", "s_add_u32 s36, s36, s37",
           f"s_add_u32 s36, s36, {WS_Q}", "s_lshl_b32 s37, s14, 16", "s_add_u32 s39, s36, s37",
           "s_lshl_b32 s37, s8, 16", "s_add_u32 s36, s36, s37"]
    def after(n):
        if n >= 16: return []
        o = [f"ds_write_b128 v{e1.T}, {vr(4*n)} offset:{(n>>2)*8192 + (n&3)*1024}",
             f"buffer_store_dwordx4 {vr(4*n)}, v{e1.VL16}, s[28:31], s36 offen offset:{(n&3)*1024} sc1"]
        if n % 4 == 3: o.append("s_add_u32 s36, s36, 8192")
        return o
    e1.kstep(a, 0, 0, last=True, st=flat(rg[12:]) + pre, packq="s[54:55]", after=after, nvm=24,
             post=lambda: set_flag(a, ST_KV, e1.T + 2))
    if timing: stamp_mid(a, 2)
    a("s_waitcnt vmcnt(16) lgkmcnt(0)")
    a("s_barrier")
    for i in range(16): a(f"ds_read_b128 {ar(128+i*4)}, v{e1.T+1} offset:{i*1024}")
    a("s_waitcnt lgkmcnt(0)")
    a("s_barrier")
    for n in range(16):
        a(f"ds_write_b128 v{e1.T}, {vr(64+4*n)} offset:{(n>>2)*8192 + (n&3)*1024}")
    a("s_waitcnt lgkmcnt(0) vmcnt(0)" if EARLYPUB else "s_waitcnt lgkmcnt(0)")
    a("s_barrier")
    for i in range(16): a(f"ds_read_b128 {ar(i*4)}, v{e1.T+1} offset:{i*1024}")
    if EARLYPUB: set_flag(a, ST_PUB, e1.T + 2)
    a(f"s_branch {att}")
    a(f"{b12l}:")
    def qfn():
        a("s_waitcnt vmcnt(0)")
        check(a, 254, 252, 0x10000, "v253", sctr="s36")
        return m_attn.q_ops("load")
    def tail_fn():
        check(a, 254, 252, 0xffff, "v253", sctr="s36")
        m_attn.setup(a, adj)
        g, fin = m_attn.ring_groups_a()
        return {24: g["K2"], 25: g["K3"], 26: g["V0"] + g["V1"], 27: g["K0"]}, g["K1"] + [fin + [flag_load(254, 252)]]
    B.body(32, [], {3: lambda: set_flag(a, ST_KV, 134)}, {22: [[flag_load(254, 252)]]}, tail_fn, qfn)
    if timing: stamp_mid(a, 2)
    a("s_waitcnt vmcnt(12)")
    a("s_barrier")
    a(f"{att}:")
    tail = m_e2.Tail(a, ta if (timing and not tb and ta != 2) else 0)
    sites = m_attn.gen_attn(a, ta if (timing and not tb) else 0, tail)
    tail.final()
    if timing: stamp_end(a, 0, done)
    a(f"{done}:")
    a("s_endpgm")
    a("code_end:")
    m_attn.emit_slow(a, sites)
    a.end_kernel(label, 512, 256, 102)
    a.launch(label, (256,1,1), (256,1,1), 163840)
    return a

if __name__ == "__main__":
    opts = dict(x.split("=") for x in sys.argv[2:] if "=" in x)
    import asmlib
    asmlib.RT = "rt" in sys.argv[2:]
    if "dbgwg" in opts: asmlib.DBGWG = int(opts["dbgwg"])
    m_attn.DBG.update(opts.get("dbg", "").split(","))
    e1.STFL = opts.get("stfl", "sc1").replace("none", "")
    a = gen(NAME + "_kernel", timing=("t" in sys.argv[2:]), adj=int(opts.get("adj", 0)),
            tb=int(opts.get("tb", 0)), sweep=int(opts.get("sweep", 1)), ta=int(opts.get("ta", 1)))
    txt = a.text()
    if "single" in sys.argv[2:]:
        txt = txt.replace(f"; @launch kernel={NAME}_kernel ", "; @launch ")
    open(sys.argv[1], "w").write(txt)
```

```python
from m_common import *
import m_e1 as e1, m_b12, m_attn, m_e2, sys
from m_e1 import DA, DB
from m_b12 import mix

PAD = None
CPF = True
EARLYPUB = True
def kv_desc(d): return dict(d, xp=2048, wp=8192)

def setup_kv(a, d):
    srd(a, d['xs'], 4, SIZES['ckv'])
    w = d['ws']
    a("s_cmp_eq_u32 s13, 0")
    a(f"s_cselect_b32 s{w}, s8, s10")
    a(f"s_cselect_b32 s{w+1}, s9, s11")
    a(f"s_and_b32 s{w+1}, s{w+1}, 0xffff")
    a(f"s_mov_b32 s{w+2}, {SIZES['wuk']}")
    a(f"s_mov_b32 s{w+3}, 0x20000")
    e1.setup_gl(a, d)
    a(f"s_lshl_b32 {d['sx']}, s14, 19")
    a(f"s_lshl_b32 {d['sw']}, s15, 9")

def kv_out_base(a):
    a("s_and_b32 s17, s16, 1")
    a("s_lshr_b32 s18, s16, 1")
    a("s_lshl_b32 s39, s15, 20")
    a("s_lshl_b32 s40, s14, 17")
    a("s_add_u32 s39, s39, s40")
    a("s_lshl_b32 s40, s17, 16")
    a("s_add_u32 s39, s39, s40")
    a("s_add_u32 s17, s13, 12")
    a("s_lshl_b32 s40, s18, s17")
    a("s_add_u32 s39, s39, s40")
    a("s_lshl_b32 s40, s13, 24")
    a("s_add_u32 s39, s39, s40")
    a("s_lshr_b32 s40, 8192, s13")
    a("s_add_u32 s19, s39, s40")

def init_done(a):
    sk = a.label("noinit")
    a("s_lshl_b32 s17, s16, 8")
    a("s_add_u32 s17, s17, s2")
    a("s_cmp_ge_u32 s17, 8")
    a(f"s_cbranch_scc1 {sk}")
    srd(a, 56, 68, 256)
    a("s_lshl_b32 s17, s2, 2")
    a(f"v_mov_b32 v{e1.T}, 1")
    a(f"v_mov_b32 v{e1.T+1}, 0")
    a("s_mov_b64 exec, 1")
    a(f"buffer_store_dword v{e1.T}, v{e1.T+1}, s[56:59], s17 offen sc1")
    a("s_mov_b64 exec, -1")
    a(f"{sk}:")

PFD = int(__import__('os').environ.get('PFD', 5))
OTHER = [('x', 44, 70), ('wq', 46, 141), ('w1', 48, 16), ('w2', 50, 16), ('w3', 52, 62), ('w4', 54, 62), ('wo', 56, 141)]
def setup_sweep(a, d):
    L = f"v{LANE}"; t = e1.T
    w0 = a.label("sw0"); w1 = a.label("sw1"); dn = a.label("swd")
    a("s_cmp_eq_u32 s16, 0")
    a(f"s_cbranch_scc1 {w0}")
    a("s_cmp_eq_u32 s16, 1")
    a(f"s_cbranch_scc1 {w1}")
    a("s_lshl_b32 s17, s2, 1")
    a("s_add_u32 s17, s17, s16")
    a("s_sub_u32 s17, s17, 2")
    start = 0
    for i, (nm, p, cnt) in enumerate(OTHER):
        if i == 0:
            a(f"s_mov_b32 s60, s{p}"); a(f"s_mov_b32 s61, s{p+1}"); a(f"s_mov_b32 s62, {SIZES[nm]}"); a("s_mov_b32 s18, 0")
        else:
            a(f"s_cmp_ge_u32 s17, {start}")
            a(f"s_cselect_b32 s60, s{p}, s60"); a(f"s_cselect_b32 s61, s{p+1}, s61")
            a(f"s_cselect_b32 s62, {SIZES[nm]}, s62"); a(f"s_cselect_b32 s18, {start}, s18")
        assert cnt * 208 * 128 >= SIZES[nm]
        start += cnt
    a("s_sub_u32 s17, s17, s18")
    a(f"s_mul_i32 s64, s17, {208*128}")
    a("s_movk_i32 s65, 2048")
    a(f"v_lshlrev_b32 v252, 5, {L}")
    a(f"s_branch {dn}")
    a(f"{w0}:")
    a(f"s_mov_b32 s60, s{d['xs']}"); a(f"s_mov_b32 s61, s{d['xs']+1}"); a(f"s_mov_b32 s62, {SIZES['ckv']}")
    a("s_bfe_u32 s17, s42, 0x20002")
    a("s_lshl_b32 s17, s17, 17")
    a("s_lshl_b32 s64, s14, 19")
    a("s_add_u32 s64, s64, s17")
    a("s_add_u32 s64, s64, 384")
    a("s_movk_i32 s65, 128")
    a(f"v_lshlrev_b32 v252, 11, {L}")
    a(f"s_branch {dn}")
    a(f"{w1}:")
    a(f"s_mov_b32 s60, s{d['ws']}"); a(f"s_mov_b32 s61, s{d['ws']+1}"); a(f"s_mov_b32 s62, {SIZES['wuk']}")
    a("s_lshl_b32 s64, s14, 16")
    a("s_lshl_b32 s17, s15, 9")
    a("s_add_u32 s64, s64, s17")
    a(f"s_add_u32 s64, s64, {3*64*8192}")
    a(f"s_mov_b32 s65, {64*8192}")
    a(f"v_lshrrev_b32 v252, 3, {L}")
    a("v_lshlrev_b32 v252, 13, v252")
    a(f"v_and_b32 v{t}, 7, {L}")
    a(f"v_lshl_add_u32 v252, v{t}, 6, v252")
    a(f"{dn}:")
    a("s_and_b32 s61, s61, 0xffff")
    a("s_mov_b32 s63, 0x20000")
SW = ["buffer_load_dword v253, v252, s[60:63], s64 offen", "s_add_u32 s64, s64, s65"]

def gen(label, timing=False, adj=0, tb=0, sweep=True, ta=1):
    a = Asm()
    a.begin_kernel(label)
    done = a.label("done")
    a("s_cmp_lt_u32 s2, 256")
    a("s_cbranch_scc1 go")
    a("s_endpgm")
    a("go:")
    a("s_getpc_b64 s[100:101]")
    a("s_sub_u32 s100, s100, 4")
    a("s_subb_u32 s101, s101, 0")
    a("s_load_dwordx2 s[4:5], s[0:1], 8")
    a("s_load_dwordx4 s[8:11], s[0:1], 24")
    a("s_load_dwordx2 s[6:7], s[0:1], 112")
    a("s_load_dwordx2 s[68:69], s[0:1], 104")
    a("s_load_dwordx2 s[44:45], s[0:1], 0")
    a("s_load_dwordx2 s[46:47], s[0:1], 16")
    a("s_load_dwordx4 s[48:51], s[0:1], 56")
    a("s_load_dwordx4 s[52:55], s[0:1], 72")
    a("s_load_dwordx2 s[56:57], s[0:1], 40")
    if timing: stamp_begin(a)
    a("s_and_b32 s12, s2, 7")
    a("s_lshr_b32 s42, s2, 3")
    a("v_lshrrev_b32 v1, 6, v0")
    a(f"v_and_b32 v{LANE}, 63, v0")
    a("v_readfirstlane_b32 s16, v1")
    if CPF:
        code_pf_addr(a, 2)
        a(code_pf(3, 2))
    a("s_bfe_u32 s14, s42, 0x10002")
    a("s_lshl_b32 s15, s12, 1")
    a("s_add_u32 s15, s15, s14")
    a("s_lshr_b32 s14, s42, 4")
    a("s_xor_b32 s14, s14, 1")
    a("s_lshl_b32 s14, s14, 2")
    a("s_and_b32 s13, s42, 3")
    a("s_add_u32 s14, s14, s13")
    a("s_bfe_u32 s13, s42, 0x10003")
    a("s_waitcnt lgkmcnt(0)")
    dkv = kv_desc(DA)
    srd(a, 28, 6, WS_SIZE)
    sk = a.label("noclr")
    a("s_cmp_ge_u32 s2, 8")
    a(f"s_cbranch_scc1 {sk}")
    a("v_lshlrev_b32 v0, 4, v0")
    for i in range(4): a(f"v_mov_b32 v{4+i}, 0")
    a("s_lshl_b32 s17, s2, 12")
    a(f"s_add_u32 s17, s17, {WS_FLAG}")
    a("buffer_store_dwordx4 v[4:7], v0, s[28:31], s17 offen sc1")
    a(f"{sk}:")
    setup_kv(a, dkv)
    e1.prologue_dma(a, dkv)
    npre = 0
    if sweep:
        setup_sweep(a, dkv)
        npre = 0
    kv_out_base(a)
    a("s_mov_b32 s66, s13")
    a("s_lshl_b32 s15, s12, 1")
    a("s_add_u32 s15, s15, s13")
    a("s_and_b32 s14, s42, 7")
    a("s_lshr_b32 s13, s42, 4")
    a("s_lshl_b32 s3, s2, 7")
    a(f"s_add_u32 s3, s3, {WS_FLAG}")
    a("s_lshl_b32 s43, s12, 4")
    a("s_and_b32 s17, s42, 15")
    a("s_add_u32 s43, s43, s17")
    e1.setup_lds(a)
    lv = a.label("vpath"); att = a.label("att")
    sw = SW; nsw = 1
    def kv_head(isV):
        a(f"s_waitcnt vmcnt(16)")
        a("s_barrier")
        if timing: stamp_mid(a, 0)
        for r in e1.reads(0, 0, 0): a(r)
        e1.kstep(a, 0, isV, dkv, first=True, st=(sw * (npre + 1) if sw else None), nvm=nsw + npre, post=lambda: init_done(a))
        if tb == 9: stamp_mid(a, 3)
        e1.steps(a, 1, 13, isV, dkv, st=sw, nvm=nsw)
        if tb == 9: stamp_mid(a, 5)
        srd(a, 56, 68, 256)
        a(f"v_lshlrev_b32 v252, 2, v{LANE}")
        a("s_load_dwordx2 s[8:9], s[0:1], 88")
        code_pf_addr(a, e1.T + 3)
        e1.kstep(a, 1, isV, dkv, st=[flag_load(254, 252, 56)] + ([code_pf(e1.T + 4, e1.T + 3)] if CPF else []),
                 post=lambda: check(a, 254, 252, 0xff, 1, srdn=56))
        m_attn.entry_flags(a, 252, 253, e1.T)

        if tb == 9: stamp_mid(a, 7)
    dq = dict(DB, xp=896, wp=8192, sx2="s56")
    B = m_b12.B12(a, "s43", e1.VL16, tb)
    qrest = a.label("qrest"); b12l = a.label("b12")
    a("s_cmp_lg_u32 s66, 0")
    a(f"s_cbranch_scc1 {lv}")
    for isV in (0, 1):
        if isV: a(f"{lv}:")
        kv_head(isV)
        la = a.label("atype")
        a("s_cmp_ge_u32 s42, 16")
        a(f"s_cbranch_scc1 {la}")
        a("s_mov_b64 s[58:59], s[46:47]")
        srd(a, 44, 44, SIZES['x'])
        srd(a, 48, 58, SIZES['wq'])
        e1.setup_gl(a, dq)
        a(f"s_mul_i32 s56, s14, {128*896}")
        a(f"s_sub_u32 s52, {15*128*896}, s56")
        a("s_lshl_b32 s53, s15, 9")
        a(f"s_mov_b32 s54, {f2u(math.log2(math.e) / 16)}")
        a("s_mov_b32 s55, s54")
        e1.kstep(a, 0, isV, dq)
        e1.kstep(a, 1, isV, dq)
        if timing: stamp_mid(a, 1)
        e1.kstep(a, 0, 0, dq, seam=(isV, None, None))
        a(f"s_branch {qrest}")
        a(f"{la}:")
        a("s_mov_b32 s38, s19")
        gx = B.setup()
        a("s_and_b32 s17, s42, 15")
        a("s_lshl_b32 s17, s17, 2")
        a("s_add_u32 s17, s17, s16")
        a(f"s_mul_i32 s23, s17, {49*128}")
        a(f"v_lshlrev_b32 v157, 7, v{LANE}")
        flat = lambda gs: [x for g in gs for x in g]
        e1.kstep(a, 0, isV, st=flat(gx) + ["buffer_load_dword v254, v157, s[56:59], s23 offen"], nvm=9,
                 st1=lambda: flat(B.dma(0)) + ["buffer_load_dword v254, v157, s[60:63], s23 offen"])
        e1.kstep(a, 1, isV, last=True, st=flat(B.dma(1)), st1=lambda: flat(B.dma(2) + B.dma(3)))
        if timing: stamp_mid(a, 1)
        a(f"s_branch {b12l}")
    a(f"{qrest}:")
    if tb == 1: stamp_mid(a, 3)
    flat = lambda gs: [x for g in gs for x in g]
    for p in range(4):
        e1.kstep(a, (p + 1) & 1, 0, dq, st=e1.deferred(0, None, p, 4), nvm=4)
        if tb == 1: stamp_mid(a, 4 + p)
    rg = []
    def post21():
        check(a, 254, 252, 0xff, "v253")
        rg.extend(m_attn.setup(a, adj))
    e1.kstep(a, 1, 0, st=[flag_load(254, 252)] + e1.deferred(0, None, 2, 8), nvm=8, post=post21, st1=lambda: flat(rg[:12]))
    pre = ["s_and_b32 s17, s16, 1", "s_lshl_b32 s19, s17, 16", "s_lshr_b32 s18, s16, 1", "s_lshl_b32 s36, s18, 12",
           "s_add_u32 s19, s19, s36", f"v_add_u32 v{e1.T}, s19, v{e1.VL16}",
           "s_lshl_b32 s19, s18, 16", "s_lshl_b32 s37, s17, 14", "s_add_u32 s19, s19, s37", f"v_add_u32 v{e1.T+1}, s19, v{e1.VL16}",
           "s_lshl_b32 s37, s17, 15", "s_add_u32 s36, s36, s37", "s_lshl_b32 s37, s15, 20", "s_add_u32 s36, s36, s37",
           f"s_add_u32 s36, s36, {WS_Q}", "s_lshl_b32 s37, s14, 16", "s_add_u32 s39, s36, s37",
           "s_lshl_b32 s37, s8, 16", "s_add_u32 s36, s36, s37"]
    def after(n):
        if n >= 16: return []
        o = [f"ds_write_b128 v{e1.T}, {vr(4*n)} offset:{(n>>2)*8192 + (n&3)*1024}",
             f"buffer_store_dwordx4 {vr(4*n)}, v{e1.VL16}, s[28:31], s36 offen offset:{(n&3)*1024} sc1"]
        if n % 4 == 3: o.append("s_add_u32 s36, s36, 8192")
        return o
    e1.kstep(a, 0, 0, last=True, st=flat(rg[12:]) + pre, packq="s[54:55]", after=after, nvm=24,
             post=lambda: set_flag(a, ST_KV, e1.T + 2))
    if timing: stamp_mid(a, 2)
    a("s_waitcnt vmcnt(16) lgkmcnt(0)")
    a("s_barrier")
    for i in range(16): a(f"ds_read_b128 {ar(128+i*4)}, v{e1.T+1} offset:{i*1024}")
    a("s_waitcnt lgkmcnt(0)")
    a("s_barrier")
    for n in range(16):
        a(f"ds_write_b128 v{e1.T}, {vr(64+4*n)} offset:{(n>>2)*8192 + (n&3)*1024}")
    a("s_waitcnt lgkmcnt(0) vmcnt(0)" if EARLYPUB else "s_waitcnt lgkmcnt(0)")
    a("s_barrier")
    for i in range(16): a(f"ds_read_b128 {ar(i*4)}, v{e1.T+1} offset:{i*1024}")
    if EARLYPUB: set_flag(a, ST_PUB, e1.T + 2)
    a(f"s_branch {att}")
    a(f"{b12l}:")
    def qfn():
        a("s_waitcnt vmcnt(0)")
        check(a, 254, 252, 0x10000, "v253", sctr="s36")
        return m_attn.q_ops("load")
    def tail_fn():
        check(a, 254, 252, 0xffff, "v253", sctr="s36")
        m_attn.setup(a, adj)
        g, fin = m_attn.ring_groups_a()
        return {24: g["K2"], 25: g["K3"], 26: g["V0"] + g["V1"], 27: g["K0"]}, g["K1"] + [fin + [flag_load(254, 252)]]
    B.body(32, [], {3: lambda: set_flag(a, ST_KV, 134)}, {22: [[flag_load(254, 252)]]}, tail_fn, qfn)
    if timing: stamp_mid(a, 2)
    a("s_waitcnt vmcnt(12)")
    a("s_barrier")
    a(f"{att}:")
    tail = m_e2.Tail(a, ta if (timing and not tb and ta != 2) else 0)
    sites = m_attn.gen_attn(a, ta if (timing and not tb) else 0, tail)
    tail.final()
    if PAD is not None:
        a("s_waitcnt vmcnt(0) lgkmcnt(0)")
        if PAD == 8:
            a("s_memrealtime s[90:91]")
            a("s_waitcnt lgkmcnt(0)")
            a("s_add_u32 s92, s90, 11000")
        elif PAD >= 0: a(f"s_add_u32 s92, s{74+2*PAD}, 11000")
        else: a("s_add_u32 s92, s72, 11000")
        a("padl:")
        a("s_memrealtime s[90:91]")
        a("s_waitcnt lgkmcnt(0)")
        a("s_sub_u32 s93, s90, s92")
        a("s_cmp_lt_i32 s93, 0")
        a("s_cbranch_scc1 padl")
    elif timing: stamp_end(a, 0, done)
    a(f"{done}:")
    a("s_endpgm")
    a("code_end:")
    m_attn.emit_slow(a, sites)
    a.end_kernel(label, 512, 256, 102)
    a.launch(label, (256,1,1), (256,1,1), 163840)
    return a

if __name__ == "__main__":
    opts = dict(x.split("=") for x in sys.argv[2:] if "=" in x)
    import asmlib
    asmlib.RT = "rt" in sys.argv[2:]
    if "dbgwg" in opts: asmlib.DBGWG = int(opts["dbgwg"])
    if "pad" in opts: PAD = int(opts["pad"])
    m_attn.DBG.update(opts.get("dbg", "").split(","))
    e1.STFL = opts.get("stfl", "sc1").replace("none", "")
    a = gen(NAME + "_kernel", timing=("t" in sys.argv[2:]), adj=int(opts.get("adj", 0)),
            tb=int(opts.get("tb", 0)), sweep=int(opts.get("sweep", 1)), ta=int(opts.get("ta", 1)))
    txt = a.text()
    if "single" in sys.argv[2:]:
        txt = txt.replace(f"; @launch kernel={NAME}_kernel ", "; @launch ")
    open(sys.argv[1], "w").write(txt)
```
